```python
import torch

def _softmax(x, axis=-1):
    return torch.softmax(x, dim=axis)
def _gelu(x):
    return torch.nn.functional.gelu(x, approximate="tanh")
def _silu(x):
    return torch.nn.functional.silu(x)
def _sigmoid(x):
    return torch.sigmoid(x)
def _layernorm(x, axis=-1, eps=1e-5):
    m = x.mean(dim=axis, keepdim=True)
    v = x.var(dim=axis, keepdim=True, unbiased=False)
    return (x - m) / torch.sqrt(v + eps)
def _scatter_add(tgt, idx, src, axis=0):
    return tgt.clone().index_add_(axis, idx, src)
def _segment_sum(src, seg, n):
    out = torch.zeros((n,) + src.shape[1:], dtype=src.dtype)
    return out.index_add_(0, seg, src)
def _pad(x, pw):
    flat = tuple(v for pair in reversed(pw) for v in pair)
    return torch.nn.functional.pad(x, flat)

kernel_name = 'gated_mix__mha_block__swiglu_ffn__prompt'

def setup_inputs():

    _w = (lambda a: (lambda t: t.to(torch.bfloat16) if t.is_floating_point() else t)(torch.as_tensor(a)))
    def _A_setup():
        B, S, D, H = 1, 2048, 640, 32
        return {
            "x": _w((lambda *s: torch.randn(*s, dtype=torch.bfloat16) * 0.05)(B, S, D)),
            "wqkv": _w((lambda *s: torch.randn(*s, dtype=torch.bfloat16) * 0.8)(D, 3 * D)),
            "wo": _w((lambda *s: torch.randn(*s, dtype=torch.bfloat16) * 0.05)(D, D)),
        }
    _A_in = _A_setup()

    def _B_setup():
        B, S, D, F = 1, 2048, 640, 1728
        return {
            "x": _w((lambda *s: torch.randn(*s, dtype=torch.bfloat16) * 0.05)(B, S, D)),
            "w_gate": _w((lambda *s: torch.randn(*s, dtype=torch.bfloat16) * 0.1)(D, F)),
            "w_up": _w((lambda *s: torch.randn(*s, dtype=torch.bfloat16) * 0.1)(D, F)),
            "w_down": _w((lambda *s: torch.randn(*s, dtype=torch.bfloat16) * 0.1)(F, D)),
        }
    _B_in = _B_setup()

    return {
        "A_x": _A_in["x"],
        "A_wqkv": _A_in["wqkv"],
        "A_wo": _A_in["wo"],
        "B_x": _B_in["x"],
        "B_w_gate": _B_in["w_gate"],
        "B_w_up": _B_in["w_up"],
        "B_w_down": _B_in["w_down"],
        "gate_w": _w((lambda *s: torch.randn(*s, dtype=torch.bfloat16) * 0.05)(640) * 16.0),
    }

def reference(A_x, A_wqkv, A_wo, B_x, B_w_gate, B_w_up, B_w_down, gate_w):
    def _A_ref(x, wqkv, wo):
        B, S, D = x.shape
        H = 32
        Dh = D // H
        qkv = (lambda x, *d: x.permute(*d))((x @ wqkv).reshape(B, S, 3, H, Dh), 2, 0, 3, 1, 4)
        q, k, v = qkv[0], qkv[1], qkv[2]
        scores = torch.einsum("bhqd,bhkd->bhqk", q, k) * (Dh ** -0.5)
        p = _softmax(scores, axis=-1)
        o = torch.einsum("bhqk,bhkd->bhqd", p, v)
        return (lambda x, *d: x.permute(*d))(o, 0, 2, 1, 3).reshape(B, S, D) @ wo

    def _B_ref(x, w_gate, w_up, w_down):
        g = _silu(x @ w_gate)
        u = x @ w_up
        return (g * u) @ w_down

    x = A_x
    g = _sigmoid((x * gate_w).sum(-1, keepdims=True))
    a = _A_ref(x, A_wqkv, A_wo)
    b = _B_ref(x, B_w_gate, B_w_up, B_w_down)
    return g * a + (1 - g) * b
```

```python
class Asm:
    def __init__(self):
        self.lines = []
        self._uid = 0
    def __call__(self, *ls):
        for l in ls:
            for s in l.split("\n"):
                s = s.strip()
                if not s:
                    continue
                self.lines.append("    " + s)
    def label(self, name):
        self.lines.append(name + ":")
    def raw(self, s):
        self.lines.append(s)
    def uid(self, p="L"):
        self._uid += 1
        return f"{p}_{self._uid}"
    def text(self):
        import re
        for l in self.lines:
            m = re.search(r"offset:(-?\d+)", l)
            if m:
                o = int(m.group(1)); op = l.split()[0]
                if op.startswith("buffer_"): assert 0 <= o <= 4095, l
                elif op.startswith("ds_"): assert 0 <= o <= 65535, l
                elif op.startswith("global_"): assert -4096 <= o <= 4095, l
        return "\n".join(self.lines) + "\n"

def vr(b, n):
    return f"v[{b}:{b+n-1}]" if n > 1 else f"v{b}"
def sr(b, n):
    return f"s[{b}:{b+n-1}]" if n > 1 else f"s{b}"
def ar(b, n):
    return f"a[{b}:{b+n-1}]" if n > 1 else f"a{b}"

def srd(a, dst, ptr, off, size):
    if off:
        a(f"s_add_u32 s{dst}, s{ptr}, {off}")
        a(f"s_addc_u32 s{dst+1}, s{ptr+1}, 0")
    else:
        a(f"s_mov_b32 s{dst}, s{ptr}")
        a(f"s_mov_b32 s{dst+1}, s{ptr+1}")
    a(f"s_mov_b32 s{dst+2}, {size}")
    a(f"s_mov_b32 s{dst+3}, 0x20000")

def kernel_header(a, name):
    a.raw(f".globl {name}")
    a.raw(".p2align 8")
    a.raw(f".type {name},@function")
    a.label(name)

def kernel_desc(name, nvgpr, nsgpr=96, accum=None):
    if accum is None:
        accum = (nvgpr + 3) // 4 * 4
    return f""".amdhsa_kernel {name}
  .amdhsa_next_free_vgpr {nvgpr}
  .amdhsa_next_free_sgpr {nsgpr}
  .amdhsa_accum_offset {accum}
  .amdhsa_group_segment_fixed_size 0
  .amdhsa_kernarg_size 88
  .amdhsa_user_sgpr_count 2
  .amdhsa_user_sgpr_kernarg_segment_ptr 1
  .amdhsa_system_sgpr_workgroup_id_x 1
  .amdhsa_float_denorm_mode_32 3
  .amdhsa_float_denorm_mode_16_64 3
.end_amdhsa_kernel
"""
```

```python
from asmlib import *
from layout import *

TPC = 8
CH = TPC*KV_TS
NSLOT = 3
AT_LDS = NSLOT*CH

def gen_at(a, name="at_kernel", force_slow=False):
    kernel_header(a, name)
    S_WS = 4
    S_WAVE, S_HEAD, S_QB = 12, 13, 14
    R_Q, R_KV, R_G, R_O = 16, 20, 24, 28
    S_CH, S_SLOTN, S_MASK = 32, 33, 34
    S_KVB = 36
    S_W1K = 37
    S_T0, S_T1, S_T2 = 38, 39, 40
    S_SLOTD = 41
    Q1, Q2, KM, KX, V0, V1A, V1B, P, O, SA, SB = 4, 8, 12, 16, 20, 24, 28, 32, 40, 56, 72
    VK, VKX, VV, VKN, VKXN, VVN = 88, 89, 90, 91, 92, 93
    VD = 94
    T0, T1, T2, T3 = 95, 96, 97, 98
    L_end = name + "_end"
    a(f"""
    s_cmp_ge_u32 s2, 256
    s_cbranch_scc1 {L_end}
    s_load_dwordx2 s[4:5], s[0:1], 80
    v_lshrrev_b32 v2, 6, v0
    v_and_b32 v1, 63, v0
    s_and_b32 s15, s2, 7
    v_readfirstlane_b32 s{S_WAVE}, v2
    s_lshr_b32 s{S_T0}, s2, 3
    s_and_b32 s{S_HEAD}, s{S_T0}, 3
    s_lshl_b32 s15, s15, 2
    s_add_u32 s{S_HEAD}, s{S_HEAD}, s15
    s_lshr_b32 s{S_QB}, s{S_T0}, 2
    s_waitcnt lgkmcnt(0)
    """)
    srd(a, R_Q, S_WS, WS_Q, Q_BYTES)
    srd(a, R_KV, S_WS, WS_KV, KV_BYTES)
    srd(a, R_G, S_WS, WS_G, G_BYTES)
    srd(a, R_O, S_WS, WS_O, O_BYTES)
    a(f"""
    s_mul_i32 s{S_KVB}, s{S_HEAD}, {KV_HS}
    s_lshl_b32 s{S_W1K}, s{S_WAVE}, 10
    v_lshlrev_b32 v{VD}, 4, v1
    v_add_u32 v{VD}, s{S_W1K}, v{VD}
    """)
    def dma(chunk_sgpr, slot_sgpr):
        lab = a.uid(name + "_dma")
        a(f"s_mul_i32 s{S_T0}, s{chunk_sgpr}, {CH}")
        a(f"s_add_u32 s{S_T0}, s{S_T0}, s{S_KVB}")
        a(f"s_add_u32 s{S_T1}, s{slot_sgpr}, s{S_W1K}")
        a(f"s_mov_b32 m0, s{S_T1}")
        a(f"s_add_u32 s{S_T2}, s{S_T0}, 8192")
        a(f"buffer_load_dwordx4 v{VD}, s[{R_KV}:{R_KV+3}], s{S_T0} offen lds")
        a(f"s_add_u32 m0, s{S_T1}, 8192")
        a(f"s_add_u32 s{S_T0}, s{S_T0}, 16384")
        a(f"buffer_load_dwordx4 v{VD}, s[{R_KV}:{R_KV+3}], s{S_T2} offen lds")
        a(f"s_cmp_ge_u32 s{S_WAVE}, 4")
        a(f"s_cbranch_scc1 {lab}")
        a(f"s_add_u32 m0, s{S_T1}, 16384")
        a("s_nop 0")
        a(f"buffer_load_dwordx4 v{VD}, s[{R_KV}:{R_KV+3}], s{S_T0} offen lds")
        a.label(lab)
    a(f"s_mov_b32 s{S_CH}, 0")
    a(f"s_mov_b32 s{S_SLOTD}, 0")
    dma(S_CH, S_SLOTD)
    a(f"""
    s_lshl_b32 s{S_T0}, s{S_QB}, 3
    s_add_u32 s{S_T0}, s{S_T0}, s{S_WAVE}
    s_mul_i32 s{S_T1}, s{S_T0}, {Q_TS}
    s_mul_i32 s{S_T2}, s{S_HEAD}, {Q_HS}
    s_add_u32 s{S_T1}, s{S_T1}, s{S_T2}
    v_lshlrev_b32 v{T0}, 4, v1
    v_and_b32 v2, 31, v1
    v_lshrrev_b32 v3, 5, v1
    v_lshlrev_b32 v{T1}, 3, v2
    buffer_load_dwordx4 {vr(Q1,4)}, v{T0}, s[{R_Q}:{R_Q+3}], s{S_T1} offen
    v_mov_b32 v{Q2}, 0
    v_mov_b32 v{Q2+1}, 0
    v_mov_b32 v{Q2+2}, 0
    v_mov_b32 v{Q2+3}, 0
    s_mov_b32 exec_hi, 0
    buffer_load_dwordx2 {vr(Q2,2)}, v{T1}, s[{R_Q}:{R_Q+3}], s{S_T1} offen offset:1024
    s_mov_b32 exec_hi, -1
    """)
    a(f"""
    s_lshl_b32 s{S_T0}, s{S_T0}, 5
    v_add_u32 v{T2}, s{S_T0}, v2
    v_lshlrev_b32 v{T2}, 3, v{T2}
    buffer_load_dword v{T3}, v{T2}, s[{R_G}:{R_G+3}], 0 offen
    """)
    a(f"""
    v_lshlrev_b32 v{VK}, 4, v1
    v_lshlrev_b32 v{VKX}, 3, v2
    v_add_u32 v{VKX}, 1024, v{VKX}
    v_mul_u32_u24 v{VV}, 320, v3
    v_lshlrev_b32 v{T0}, 4, v2
    v_add_u32 v{VV}, v{VV}, v{T0}
    v_add_u32 v{VV}, 1280, v{VV}
    v_add_u32 v{VKN}, {CH}, v{VK}
    v_add_u32 v{VKXN}, {CH}, v{VKX}
    v_add_u32 v{VVN}, {CH}, v{VV}
    s_mov_b32 s{S_MASK}, 0xfffff
    s_mov_b32 s{S_MASK+1}, 0xfffff
    s_mov_b32 s{S_SLOTN}, {CH}
    """)
    for r in range(12):
        a(f"v_mov_b32 v{V0+r}, 0x3f803f80")
    for r in range(8):
        a(f"v_mov_b32 v{P+r}, 0")
    for r in range(16):
        a(f"v_mov_b32 v{O+r}, 0")
    a(f"v_mov_b32 v{KX+2}, 0")
    a(f"v_mov_b32 v{KX+3}, 0")
    if force_slow:
        a("s_waitcnt vmcnt(0)")
        a(f"s_branch {name}_slow")
    a("s_waitcnt vmcnt(0)")
    a("s_barrier")
    a(f"s_mov_b32 s{S_CH}, 1")
    a(f"s_mov_b32 s{S_SLOTD}, {CH}")
    dma(S_CH, S_SLOTD)
    a(f"""
    ds_read_b128 {vr(KM,4)}, v{VK}
    ds_read_b64 {vr(KX,2)}, v{VKX}
    s_waitcnt lgkmcnt(0)
    v_mfma_f32_32x32x16_bf16 {vr(SA,16)}, {vr(KM,4)}, {vr(Q1,4)}, 0
    ds_read_b128 {vr(KM,4)}, v{VK} offset:{KV_TS}
    v_mfma_f32_32x32x16_bf16 {vr(SA,16)}, {vr(KX,4)}, {vr(Q2,4)}, {vr(SA,16)}
    ds_read_b64 {vr(KX,2)}, v{VKX} offset:{KV_TS}
    s_mov_b64 exec, s[{S_MASK}:{S_MASK+1}]
    ds_read_b128 {vr(V0,4)}, v{VV}
    ds_read_b128 {vr(V1A,4)}, v{VV} offset:640
    s_mov_b64 exec, -1
    s_mov_b32 s{S_CH}, 0
    s_nop 7
    """)
    def E(S, r): a(f"v_exp_f32 v{S+r}, v{S+r}")
    def C(S, j): a(f"v_cvt_pk_bf16_f32 v{P+j}, v{S+2*j}, v{S+2*j+1}")
    def tile(t):
        Sc, Sn = (SA, SB) if t % 2 == 0 else (SB, SA)
        V1cur = V1A if t % 2 == 0 else V1B
        V1prev = V1B if t % 2 == 0 else V1A
        V1next = V1prev
        def kaddr(tt, cur, nxt):
            return (cur, tt*KV_TS) if tt < TPC else (nxt, (tt-TPC)*KV_TS)
        if t == TPC-2:
            lab = a.uid(name + "_nodma")
            a("s_waitcnt vmcnt(0)")
            a("s_barrier")
            a(f"s_add_u32 s{S_CH}, s{S_CH}, 2")
            a(f"s_cmp_ge_u32 s{S_CH}, 8")
            a(f"s_cbranch_scc1 {lab}")
            a(f"s_add_u32 s{S_SLOTD}, s{S_SLOTN}, {CH}")
            a(f"s_cmp_ge_u32 s{S_SLOTD}, {NSLOT*CH}")
            a(f"s_cselect_b32 s{S_SLOTD}, 0, s{S_SLOTD}")
            dma(S_CH, S_SLOTD)
            a.label(lab)
            a(f"s_sub_u32 s{S_CH}, s{S_CH}, 2")
        a("s_waitcnt lgkmcnt(3)")
        a(f"v_mfma_f32_32x32x16_bf16 {vr(Sn,16)}, {vr(KM,4)}, {vr(Q1,4)}, 0")
        r, o = kaddr(t+2, VK, VKN)
        a(f"ds_read_b128 {vr(KM,4)}, v{r} offset:{o}")
        for e in range(0, 4): E(Sc, e)
        C(Sc, 0); C(Sc, 1)
        a(f"v_mfma_f32_32x32x16_bf16 {vr(O,16)}, {vr(V1prev,4)}, {vr(P+4,4)}, {vr(O,16)}")
        for e in range(4, 8): E(Sc, e)
        C(Sc, 2); C(Sc, 3)
        a("s_waitcnt lgkmcnt(3)")
        a(f"v_mfma_f32_32x32x16_bf16 {vr(Sn,16)}, {vr(KX,4)}, {vr(Q2,4)}, {vr(Sn,16)}")
        r, o = kaddr(t+2, VKX, VKXN)
        a(f"ds_read_b64 {vr(KX,2)}, v{r} offset:{o}")
        for e in range(8, 12): E(Sc, e)
        C(Sc, 4); C(Sc, 5)
        a("s_waitcnt lgkmcnt(3)")
        a(f"v_mfma_f32_32x32x16_bf16 {vr(O,16)}, {vr(V0,4)}, {vr(P,4)}, {vr(O,16)}")
        r, o = kaddr(t+1, VV, VVN)
        a(f"s_mov_b64 exec, s[{S_MASK}:{S_MASK+1}]")
        a(f"ds_read_b128 {vr(V0,4)}, v{r} offset:{o}")
        a(f"ds_read_b128 {vr(V1next,4)}, v{r} offset:{o+640}")
        a("s_mov_b64 exec, -1")
        for e in range(12, 16): E(Sc, e)
        C(Sc, 6); C(Sc, 7)
    a.raw(".p2align 6")
    a.label(f"{name}_loop")
    for t in range(TPC):
        tile(t)
    a(f"""
    v_mov_b32 v{VK}, v{VKN}
    v_mov_b32 v{VKX}, v{VKXN}
    v_mov_b32 v{VV}, v{VVN}
    s_add_u32 s{S_T0}, s{S_SLOTN}, {CH}
    s_cmp_ge_u32 s{S_T0}, {NSLOT*CH}
    s_cselect_b32 s{S_T0}, 0, s{S_T0}
    s_sub_u32 s{S_T1}, s{S_T0}, s{S_SLOTN}
    s_mov_b32 s{S_SLOTN}, s{S_T0}
    v_add_u32 v{VKN}, s{S_T1}, v{VKN}
    v_add_u32 v{VKXN}, s{S_T1}, v{VKXN}
    v_add_u32 v{VVN}, s{S_T1}, v{VVN}
    s_add_u32 s{S_CH}, s{S_CH}, 1
    s_cmp_lt_u32 s{S_CH}, 8
    s_cbranch_scc1 {name}_loop
    """)
    a("s_waitcnt lgkmcnt(0)")
    a(f"v_mfma_f32_32x32x16_bf16 {vr(O,16)}, {vr(V1B,4)}, {vr(P+4,4)}, {vr(O,16)}")
    a("s_nop 15")
    a(f"v_mov_b32 v{T0}, 0")
    for r in range(12):
        a(f"v_fmac_f32 v{T0}, 0, v{O+r}")
    a(f"""
    s_mov_b32 s{S_T0}, 0x2b800000
    s_mov_b32 s{S_T1}, 0x5f800000
    v_cmp_gt_f32 vcc, s{S_T0}, v{O+12}
    v_add_f32 v{T0}, v{T0}, v{O+12}
    s_mov_b64 s[42:43], vcc
    v_cmp_nge_f32 vcc, s{S_T1}, v{T0}
    s_or_b64 s[42:43], vcc, s[42:43]
    s_cbranch_scc1 {name}_slow
    """)
    a.label(f"{name}_fin")
    a(f"""
    v_rcp_f32 v{T0}, v{O+12}
    s_lshl_b32 s{S_T0}, s{S_QB}, 3
    s_add_u32 s{S_T0}, s{S_T0}, s{S_WAVE}
    s_lshl_b32 s{S_T0}, s{S_T0}, 5
    v_mul_f32 v{T0}, v{T0}, v{T3}
    v_add_u32 v{T1}, s{S_T0}, v2
    v_mul_u32_u24 v{T1}, 1280, v{T1}
    s_mul_i32 s{S_T1}, s{S_HEAD}, 40
    v_lshlrev_b32 v{T2}, 3, v3
    v_add3_u32 v{T1}, v{T1}, v{T2}, s{S_T1}
    """)
    for q in range(3):
        for e in range(4):
            a(f"v_mul_f32 v{O+4*q+e}, v{T0}, v{O+4*q+e}")
        a(f"v_cvt_pk_bf16_f32 v{P+2*q}, v{O+4*q}, v{O+4*q+1}")
        a(f"v_cvt_pk_bf16_f32 v{P+2*q+1}, v{O+4*q+2}, v{O+4*q+3}")
    a(f"buffer_store_dwordx2 {vr(P,2)}, v{T1}, s[{R_O}:{R_O+3}], 0 offen")
    a(f"buffer_store_dwordx2 {vr(P+2,2)}, v{T1}, s[{R_O}:{R_O+3}], 0 offen offset:16")
    a("s_mov_b32 exec_hi, 0")
    a(f"buffer_store_dwordx2 {vr(P+4,2)}, v{T1}, s[{R_O}:{R_O+3}], 0 offen offset:32")
    a("s_endpgm")
    a.label(f"{name}_slow")
    M, MN, AL = VK, VKX, VKN
    a(f"""
    v_lshlrev_b32 v{VD}, 4, v1
    v_lshlrev_b32 v{VKXN}, 3, v2
    v_mul_u32_u24 v{VV}, 320, v3
    v_lshlrev_b32 v{T0}, 4, v2
    v_add_u32 v{VV}, v{VV}, v{T0}
    v_mov_b32 v{M}, 0xff800000
    s_mov_b32 s{S_CH}, s{S_KVB}
    s_add_u32 s{S_SLOTN}, s{S_KVB}, {KV_HS}
    """)
    for r in range(16):
        a(f"v_mov_b32 v{O+r}, 0")
    for r in range(8):
        a(f"v_mov_b32 v{V0+r}, 0x3f803f80")
    a.label(f"{name}_sloop")
    a(f"""
    buffer_load_dwordx4 {vr(KM,4)}, v{VD}, s[{R_KV}:{R_KV+3}], s{S_CH} offen
    buffer_load_dwordx2 {vr(KX,2)}, v{VKXN}, s[{R_KV}:{R_KV+3}], s{S_CH} offen offset:1024
    s_mov_b64 exec, s[{S_MASK}:{S_MASK+1}]
    buffer_load_dwordx4 {vr(V0,4)}, v{VV}, s[{R_KV}:{R_KV+3}], s{S_CH} offen offset:1280
    buffer_load_dwordx4 {vr(V1A,4)}, v{VV}, s[{R_KV}:{R_KV+3}], s{S_CH} offen offset:1920
    s_mov_b64 exec, -1
    s_waitcnt vmcnt(2)
    v_mfma_f32_32x32x16_bf16 {vr(SA,16)}, {vr(KM,4)}, {vr(Q1,4)}, 0
    v_mfma_f32_32x32x16_bf16 {vr(SA,16)}, {vr(KX,4)}, {vr(Q2,4)}, {vr(SA,16)}
    s_nop 15
    v_max3_f32 v{MN}, v{SA}, v{SA+1}, v{M}
    """)
    for r in range(2, 16, 2):
        a(f"v_max3_f32 v{MN}, v{SA+r}, v{SA+r+1}, v{MN}")
    a(f"""
    v_mov_b32 v{T0}, v{MN}
    s_nop 1
    v_permlane32_swap_b32 v{MN}, v{T0}
    s_nop 1
    v_max_f32 v{MN}, v{MN}, v{T0}
    v_sub_f32 v{AL}, v{M}, v{MN}
    v_exp_f32 v{AL}, v{AL}
    v_mov_b32 v{M}, v{MN}
    """)
    for r in range(16):
        a(f"v_sub_f32 v{SA+r}, v{SA+r}, v{MN}")
    for r in range(16):
        a(f"v_mul_f32 v{O+r}, v{AL}, v{O+r}")
    for r in range(16):
        E(SA, r)
    a("s_nop 0")
    for j in range(8):
        C(SA, j)
    a(f"""
    s_waitcnt vmcnt(0)
    s_nop 1
    v_mfma_f32_32x32x16_bf16 {vr(O,16)}, {vr(V0,4)}, {vr(P,4)}, {vr(O,16)}
    v_mfma_f32_32x32x16_bf16 {vr(O,16)}, {vr(V1A,4)}, {vr(P+4,4)}, {vr(O,16)}
    s_add_u32 s{S_CH}, s{S_CH}, {KV_TS}
    s_nop 15
    s_cmp_lt_u32 s{S_CH}, s{S_SLOTN}
    s_cbranch_scc1 {name}_sloop
    s_branch {name}_fin
    """)
    a.label(L_end)
    a("s_endpgm")
    return 100
```

```python
import sys, importlib
from asmlib import *
from layout import *

HEADER = open("gated_mix__mha_block__swiglu_ffn__prompt.s.ref").read().split("; Override launch")[0]

def assemble(parts):
    a = Asm()
    descs = []
    launches = []
    done = set()
    for (name, gen, grid, block, lds) in parts:
        launches.append(f"; @launch kernel={name} grid=({grid},1,1) block=({block},1,1) lds={lds}")
        if name in done:
            continue
        done.add(name)
        r = gen(a, name)
        if isinstance(r, tuple):
            nv, accum = r
        else:
            nv, accum = r, None
        descs.append(kernel_desc(name, nv, 96, accum))
    txt = HEADER + "\n".join(launches) + "\n"
    txt += '.amdgcn_target "amdgcn-amd-amdhsa--gfx950"\n.text\n'
    txt += a.text()
    txt += '.section .rodata,"a"\n.p2align 6\n' + "\n.p2align 6\n".join(descs)
    return txt
```

```python
from asmlib import *
from layout import *

def gen_g1(a, name="g1_kernel"):
    NS = 4
    kernel_header(a, name)
    S_X, S_W, S_GW, S_WS = 4, 6, 8, 10
    S_WAVE, S_RB, S_CB, S_SEC, S_CB5 = 12, 13, 14, 15, 16
    R_X, R_W, R_O = 20, 24, 28
    L_end = name + "_end"
    a(f"""
    s_cmp_ge_u32 s2, 256
    s_cbranch_scc1 {L_end}
    s_load_dwordx4 s[4:7], s[0:1], 0
    s_load_dwordx2 s[8:9], s[0:1], 56
    s_load_dwordx2 s[10:11], s[0:1], 80
    v_lshrrev_b32 v2, 6, v0
    v_and_b32 v1, 63, v0
    s_and_b32 s17, s2, 7
    v_readfirstlane_b32 s{S_WAVE}, v2
    s_lshr_b32 s18, s2, 3
    s_and_b32 s{S_RB}, s17, 1
    s_lshl_b32 s{S_RB}, s{S_RB}, 3
    s_and_b32 s19, s18, 7
    s_add_u32 s{S_RB}, s{S_RB}, s19
    s_lshr_b32 s{S_CB}, s17, 1
    s_lshl_b32 s{S_CB}, s{S_CB}, 2
    s_lshr_b32 s19, s18, 3
    s_add_u32 s{S_CB}, s{S_CB}, s19
    s_waitcnt lgkmcnt(0)
    """)
    srd(a, R_X, S_X, 0, X_BYTES)
    a(f"s_cmp_eq_u32 s{S_CB}, 15")
    a(f"s_cbranch_scc1 {name}_gate")
    srd(a, R_W, S_W, 0, WQKV_BYTES)
    a(f"""
    s_mul_i32 s{S_SEC}, s{S_CB}, 52
    s_lshr_b32 s{S_SEC}, s{S_SEC}, 8
    s_mul_i32 s17, s{S_SEC}, 5
    s_sub_u32 s{S_CB5}, s{S_CB}, s17
    s_cmp_ge_u32 s{S_WAVE}, 4
    s_cbranch_scc1 {name}_loader
    """)
    VX, VW = 4, 8
    FR = 12
    ACC = 48
    def fW(set_, ft): return FR + set_*16 + ft*4
    def fX(set_, tt): return FR + set_*16 + 8 + tt*4
    def acc(ft, tt): return ACC + (ft*2+tt)*16
    a(f"""
    s_and_b32 s17, s{S_WAVE}, 1
    s_lshr_b32 s18, s{S_WAVE}, 1
    v_and_b32 v2, 31, v1
    v_lshrrev_b32 v3, 5, v1
    s_lshl_b32 s19, s18, 6
    v_add_u32 v44, s19, v2
    v_lshrrev_b32 v45, 1, v44
    v_and_b32 v45, 7, v45
    v_xor_b32 v45, v45, v3
    v_lshlrev_b32 v45, 4, v45
    v_lshlrev_b32 v44, 7, v44
    v_add_u32 v{VX}, v44, v45
    v_xor_b32 v{VX+1}, 32, v{VX}
    v_xor_b32 v{VX+2}, 64, v{VX}
    v_xor_b32 v{VX+3}, 96, v{VX}
    """)
    a(f"""
    v_lshrrev_b32 v44, 4, v1
    v_and_b32 v45, 15, v1
    v_lshrrev_b32 v46, 2, v45
    v_and_b32 v45, 3, v45
    v_and_b32 v47, 1, v44
    v_lshlrev_b32 v47, 2, v47
    v_add_u32 v45, v45, v47
    v_lshrrev_b32 v44, 1, v44
    v_lshlrev_b32 v44, 3, v44
    v_add_u32 v44, v44, v46
    v_lshlrev_b32 v44, 8, v44
    v_lshrrev_b32 v47, 1, v45
    s_lshl_b32 s19, s17, 3
    v_add_u32 v47, s19, v47
    v_lshlrev_b32 v46, 2, v46
    v_xor_b32 v47, v47, v46
    v_lshlrev_b32 v47, 4, v47
    v_and_b32 v45, 1, v45
    v_lshlrev_b32 v45, 3, v45
    v_add3_u32 v44, v44, v47, v45
    v_add_u32 v{VW}, 0x10000, v44
    v_xor_b32 v{VW+1}, 64, v{VW}
    """)
    for r in range(64):
        a(f"v_mov_b32 v{ACC+r}, 0")
    def reads(stage, s, set_):
        slot = stage % NS
        for ft in range(2):
            for ab in range(2):
                a(f"ds_read_b64_tr_b16 {vr(fW(set_,ft)+2*ab,2)}, v{VW+ft} offset:{slot*16384+s*4096+ab*1024}")
        for tt in range(2):
            a(f"ds_read_b128 {vr(fX(set_,tt),4)}, v{VX+s} offset:{slot*16384+tt*4096}")
    def mfmas(set_, orient):
        for ft in range(2):
            for tt in range(2):
                A, B = (fW(set_,ft), fX(set_,tt)) if orient == "T" else (fX(set_,tt), fW(set_,ft))
                a(f"v_mfma_f32_32x32x16_bf16 {vr(acc(ft,tt),16)}, {vr(A,4)}, {vr(B,4)}, {vr(acc(ft,tt),16)}")
    def mainloop(orient):
        a("s_barrier")
        reads(0, 0, 0)
        for n in range(40):
            st, s = divmod(n, 4)
            if s < 3:
                reads(st, s+1, (n+1) & 1)
                a("s_waitcnt lgkmcnt(6)")
            else:
                a("s_waitcnt lgkmcnt(0)")
                if st < 9:
                    a("s_barrier")
                    reads(st+1, 0, (n+1) & 1)
            mfmas(n & 1, orient)
        a("s_nop 15")
    a(f"s_cmp_eq_u32 s{S_SEC}, 2")
    a(f"s_cbranch_scc1 {name}_v")
    mainloop("T")
    a(f"s_cmp_eq_u32 s{S_SEC}, 0")
    a(f"s_mov_b32 s32, {WS_KV}")
    a(f"s_mov_b32 s33, {KV_BYTES}")
    a(f"s_mov_b32 s34, {KV_HS}")
    a(f"s_mov_b32 s35, {KV_TS}")
    a(f"s_cselect_b32 s32, {WS_Q}, s32")
    a(f"s_cselect_b32 s33, {Q_BYTES}, s33")
    a(f"s_cselect_b32 s34, {Q_HS}, s34")
    a(f"s_cselect_b32 s35, {Q_TS}, s35")
    a(f"s_cselect_b32 s36, {QSCALE_BITS}, 1.0")
    a(f"s_add_u32 s{R_O}, s{S_WS}, s32")
    a(f"s_addc_u32 s{R_O+1}, s{S_WS+1}, 0")
    a(f"s_mov_b32 s{R_O+2}, s33")
    a(f"s_mov_b32 s{R_O+3}, 0x20000")
    a(f"""
    s_lshl_b32 s37, s{S_RB}, 2
    s_lshl_b32 s38, s18, 1
    s_add_u32 s37, s37, s38
    s_mul_i32 s37, s37, s35
    s_lshl_b32 s38, s{S_CB5}, 5
    s_lshl_b32 s39, s17, 4
    s_add_u32 s38, s38, s39
    v_lshlrev_b32 v10, 3, v2
    v_lshlrev_b32 v11, 4, v2
    """)
    for ft in range(2):
        for q in range(4):
            a(f"""
            v_add_u32 v12, s38, v3
            v_add_u32 v12, {ft*8+2*q}, v12
            v_mul_u32_u24 v13, 52429, v12
            v_lshrrev_b32 v13, 18, v13
            v_mul_u32_u24 v14, 5, v13
            v_sub_u32 v14, v12, v14
            v_mul_lo_u32 v13, v13, s34
            v_lshrrev_b32 v15, 1, v14
            v_lshlrev_b32 v15, 9, v15
            v_and_b32 v16, 1, v14
            v_lshlrev_b32 v16, 3, v16
            v_cmp_eq_u32 vcc, 4, v14
            v_add3_u32 v13, v13, v15, v16
            v_add_u32 v13, s37, v13
            v_cndmask_b32 v17, v11, v10, vcc
            v_add_u32 v13, v13, v17
            """)
            for tt in range(2):
                b = acc(ft, tt) + 4*q
                for e in range(4):
                    a(f"v_mul_f32 v{b+e}, s36, v{b+e}")
                a(f"v_cvt_pk_bf16_f32 v18, v{b}, v{b+1}")
                a(f"v_cvt_pk_bf16_f32 v19, v{b+2}, v{b+3}")
                if tt == 1:
                    a(f"v_add_u32 v13, s35, v13")
                a(f"buffer_store_dwordx2 v[18:19], v13, s[{R_O}:{R_O+3}], 0 offen")
                a("s_nop 1")
    a("s_endpgm")
    a.label(f"{name}_v")
    mainloop("N")
    srd(a, R_O, S_WS, WS_KV, KV_BYTES)
    a(f"""
    s_lshl_b32 s37, s{S_RB}, 2
    s_lshl_b32 s38, s18, 1
    s_add_u32 s37, s37, s38
    s_mul_i32 s37, s37, {KV_TS}
    s_add_u32 s37, s37, 1280
    s_lshl_b32 s38, s{S_CB5}, 7
    s_lshl_b32 s39, s17, 6
    s_add_u32 s38, s38, s39
    s_mov_b32 s34, {KV_HS}
    v_mul_u32_u24 v11, 320, v3
    """)
    for ft in range(2):
        a(f"""
        v_add_u32 v12, s38, v2
        v_add_u32 v12, {ft*32}, v12
        v_mul_u32_u24 v13, 52429, v12
        v_lshrrev_b32 v13, 20, v13
        v_mul_u32_u24 v14, 20, v13
        v_sub_u32 v14, v12, v14
        v_mul_lo_u32 v13, v13, s34
        v_lshlrev_b32 v14, 4, v14
        v_add3_u32 v13, v13, v14, v11
        v_add_u32 v13, s37, v13
        """)
        for tt in range(2):
            for step in range(2):
                b = acc(ft, tt) + 8*step
                for e in range(4):
                    a(f"v_cvt_pk_bf16_f32 v{20+e}, v{b+2*e}, v{b+2*e+1}")
                a(f"buffer_store_dwordx4 v[20:23], v13, s[{R_O}:{R_O+3}], 0 offen offset:{tt*KV_TS+step*640}")
                a("s_nop 1")
    a("s_endpgm")
    a.label(f"{name}_loader")
    a(f"""
    s_sub_u32 s17, s{S_WAVE}, 4
    s_lshl_b32 s18, s{S_RB}, 7
    v_lshrrev_b32 v2, 3, v1
    v_and_b32 v3, 7, v1
    v_lshrrev_b32 v4, 4, v1
    v_and_b32 v5, 15, v1
    """)
    for i in range(4):
        a(f"""
        s_lshl_b32 s19, s17, 5
        s_add_u32 s19, s19, {8*i}
        v_add_u32 v6, s19, v2
        v_lshrrev_b32 v7, 1, v6
        v_and_b32 v7, 7, v7
        v_xor_b32 v7, v7, v3
        v_lshlrev_b32 v7, 4, v7
        v_add_u32 v6, s18, v6
        v_mul_u32_u24 v6, 1280, v6
        v_add_u32 v6, v6, v7
        v_subrev_u32 v{10+i}, {1024*i}, v6
        s_lshl_b32 s19, s17, 4
        s_add_u32 s19, s19, {4*i}
        v_add_u32 v6, s19, v4
        v_mul_u32_u24 v6, 3840, v6
        v_lshlrev_b32 v7, 2, v4
        v_xor_b32 v7, v7, v5
        v_lshlrev_b32 v7, 4, v7
        v_add_u32 v6, v6, v7
        s_lshl_b32 s19, s{S_CB}, 8
        v_add_u32 v6, s19, v6
        v_subrev_u32 v{14+i}, {1024*i}, v6
        """)
    a(f"s_lshl_b32 s40, s17, 12")
    def issue(stage):
        slot = stage % NS
        a(f"s_add_u32 m0, s40, {slot*16384}")
        a(f"s_mov_b32 s41, {stage*128}")
        for i in range(4):
            a(f"buffer_load_dwordx4 v{10+i}, s[{R_X}:{R_X+3}], s41 offen offset:{1024*i} lds")
        a(f"s_add_u32 m0, s40, {65536+slot*16384}")
        a(f"s_mov_b32 s42, {stage*64*3840}")
        for i in range(4):
            a(f"buffer_load_dwordx4 v{14+i}, s[{R_W}:{R_W+3}], s42 offen offset:{1024*i} lds")
    for st in range(NS):
        issue(st)
    issued = NS
    for i in range(10):
        a(f"s_waitcnt vmcnt({8*(issued-1-i)})")
        a("s_barrier")
        if i >= 1 and issued < 10:
            issue(issued); issued += 1
    a("s_endpgm")
    a.label(f"{name}_gate")
    R_G = 24
    srd(a, R_G, S_GW, 0, 1280)
    srd(a, R_O, S_WS, WS_G, G_BYTES)
    a(f"""
    v_and_b32 v2, 15, v1
    v_lshrrev_b32 v3, 4, v1
    v_mul_u32_u24 v4, 80, v2
    """)
    for i in range(5):
        a(f"buffer_load_dwordx4 {vr(8+4*i,4)}, v4, s[{R_G}:{R_G+3}], 0 offen offset:{16*i}")
    a(f"""
    s_lshl_b32 s17, s{S_RB}, 7
    s_lshl_b32 s18, s{S_WAVE}, 4
    s_add_u32 s17, s17, s18
    v_add_u32 v5, s17, v3
    v_mul_u32_u24 v6, 1280, v5
    v_add_u32 v6, v6, v4
    """)
    for rd in range(4):
        for i in range(5):
            a(f"s_mov_b32 s19, {rd*4*1280}")
            a(f"buffer_load_dwordx4 {vr(100+20*rd+4*i,4)}, v6, s[{R_X}:{R_X+3}], s19 offen offset:{16*i}")
    a("s_waitcnt vmcnt(20)")
    for i in range(20):
        a(f"v_lshlrev_b32 v{40+2*i}, 16, v{8+i}")
        a(f"v_and_b32 v{41+2*i}, 0xffff0000, v{8+i}")
    for rd in range(4):
        a(f"s_waitcnt vmcnt({5*(3-rd)})")
        a("v_mov_b32 v30, 0")
        a("v_mov_b32 v31, 0")
        for i in range(20):
            x = 100+20*rd+i
            a(f"v_lshlrev_b32 v32, 16, v{x}")
            a(f"v_and_b32 v33, 0xffff0000, v{x}")
            a(f"v_fmac_f32 v30, v32, v{40+2*i}")
            a(f"v_fmac_f32 v31, v33, v{41+2*i}")
        a("v_add_f32 v30, v30, v31")
        for sh in (8, 4, 2, 1):
            a("s_nop 1")
            a(f"v_add_f32_dpp v30, v30, v30 row_ror:{sh} row_mask:0xf bank_mask:0xf")
        a(f"""
        v_cvt_pk_bf16_f32 v31, v30, v30
        v_lshlrev_b32 v30, 16, v31
        v_mul_f32 v30, 0xbfb8aa3b, v30
        v_exp_f32 v30, v30
        s_nop 0
        v_add_f32 v30, 1.0, v30
        v_rcp_f32 v30, v30
        s_nop 0
        v_cvt_pk_bf16_f32 v31, v30, v30
        v_lshlrev_b32 v34, 16, v31
        v_sub_f32 v35, 1.0, v34
        v_cvt_pk_bf16_f32 v31, v35, v35
        v_lshlrev_b32 v35, 16, v31
        v_add_u32 v36, {rd*4}, v5
        v_lshlrev_b32 v36, 3, v36
        v_cmp_eq_u32 vcc, 0, v2
        s_and_saveexec_b64 s[44:45], vcc
        buffer_store_dwordx2 v[34:35], v36, s[{R_O}:{R_O+3}], 0 offen
        s_mov_b64 exec, s[44:45]
        """)
    a.label(L_end)
    a("s_endpgm")
    return 180
```

```python
from asmlib import *
from layout import *

def gen_g2(a, name="g2_kernel"):
    NS = 4
    kernel_header(a, name)
    S_X, S_WG, S_WU, S_WS = 4, 6, 8, 10
    S_WAVE, S_RB, S_CB = 12, 13, 14
    R_X, R_WG, R_WU, R_O, R_G = 20, 24, 28, 32, 36
    L_end = name + "_end"
    a(f"""
    s_cmp_ge_u32 s2, 448
    s_cbranch_scc1 {L_end}
    s_load_dwordx2 s[4:5], s[0:1], 0
    s_load_dwordx4 s[24:27], s[0:1], 32
    s_load_dwordx2 s[10:11], s[0:1], 80
    v_lshrrev_b32 v2, 6, v0
    v_and_b32 v1, 63, v0
    s_and_b32 s17, s2, 7
    v_readfirstlane_b32 s{S_WAVE}, v2
    s_lshr_b32 s18, s2, 3
    s_and_b32 s{S_RB}, s17, 1
    s_lshl_b32 s{S_RB}, s{S_RB}, 3
    s_and_b32 s19, s18, 7
    s_add_u32 s{S_RB}, s{S_RB}, s19
    s_lshr_b32 s{S_CB}, s17, 1
    s_mul_i32 s{S_CB}, s{S_CB}, 7
    s_lshr_b32 s19, s18, 3
    s_add_u32 s{S_CB}, s{S_CB}, s19
    s_cmp_ge_u32 s{S_CB}, 27
    s_cbranch_scc1 {L_end}
    s_waitcnt lgkmcnt(0)
    s_mov_b32 s6, s24
    s_mov_b32 s7, s25
    s_mov_b32 s8, s26
    s_mov_b32 s9, s27
    """)
    srd(a, R_X, S_X, 0, X_BYTES)
    srd(a, R_WG, S_WG, 0, WG_BYTES)
    srd(a, R_WU, S_WU, 0, WG_BYTES)
    a(f"s_cmp_ge_u32 s{S_WAVE}, 4")
    a(f"s_cbranch_scc1 {name}_loader")
    srd(a, R_O, S_WS, WS_H, H_BYTES)
    srd(a, R_G, S_WS, WS_G, G_BYTES)
    VX, VW = 4, 8
    FR = 12
    ACC = 48
    OMG = 10
    def fW(set_, ft): return FR + set_*16 + ft*4
    def fX(set_, tt): return FR + set_*16 + 8 + tt*4
    def acc(ft, tt): return ACC + (ft*2+tt)*16
    a(f"""
    s_and_b32 s17, s{S_WAVE}, 1
    s_lshr_b32 s18, s{S_WAVE}, 1
    v_and_b32 v2, 31, v1
    v_lshrrev_b32 v3, 5, v1
    s_lshl_b32 s19, s18, 6
    v_add_u32 v44, s19, v2
    s_lshl_b32 s40, s{S_RB}, 7
    v_add_u32 v46, s40, v44
    v_lshlrev_b32 v47, 3, v46
    buffer_load_dword v{OMG}, v47, s[{R_G}:{R_G+3}], 0 offen offset:4
    buffer_load_dword v{OMG+1}, v47, s[{R_G}:{R_G+3}], 0 offen offset:260
    v_lshrrev_b32 v45, 1, v44
    v_and_b32 v45, 7, v45
    v_xor_b32 v45, v45, v3
    v_lshlrev_b32 v45, 4, v45
    v_lshlrev_b32 v44, 7, v44
    v_add_u32 v{VX}, v44, v45
    v_xor_b32 v{VX+1}, 32, v{VX}
    v_xor_b32 v{VX+2}, 64, v{VX}
    v_xor_b32 v{VX+3}, 96, v{VX}
    """)
    a(f"""
    v_lshrrev_b32 v44, 4, v1
    v_and_b32 v45, 15, v1
    v_lshrrev_b32 v46, 2, v45
    v_and_b32 v45, 3, v45
    v_and_b32 v47, 1, v44
    v_lshrrev_b32 v44, 1, v44
    v_lshlrev_b32 v44, 3, v44
    v_add_u32 v44, v44, v46
    v_lshlrev_b32 v44, 7, v44
    v_lshlrev_b32 v112, 13, v47
    v_add_u32 v44, v44, v112
    v_lshrrev_b32 v46, 1, v46
    v_lshlrev_b32 v47, 1, v47
    v_xor_b32 v46, v46, v47
    s_lshl_b32 s19, s17, 1
    v_xor_b32 v46, s19, v46
    v_lshlrev_b32 v46, 5, v46
    v_and_b32 v47, 1, v45
    v_lshlrev_b32 v47, 1, v47
    v_lshrrev_b32 v45, 1, v45
    v_or_b32 v45, v45, v47
    v_lshlrev_b32 v45, 3, v45
    v_add3_u32 v44, v44, v46, v45
    v_add_u32 v{VW}, 0x10000, v44
    v_xor_b32 v{VW+1}, 32, v{VW}
    """)
    for r in range(64):
        a(f"v_mov_b32 v{ACC+r}, 0")
    def reads(stage, s, set_):
        slot = stage % NS
        for ft in range(2):
            for ab in range(2):
                a(f"ds_read_b64_tr_b16 {vr(fW(set_,ft)+2*ab,2)}, v{VW+ft} offset:{slot*16384+s*2048+ab*512}")
        for tt in range(2):
            a(f"ds_read_b128 {vr(fX(set_,tt),4)}, v{VX+s} offset:{slot*16384+tt*4096}")
    def mfmas(set_):
        for ft in range(2):
            for tt in range(2):
                a(f"v_mfma_f32_32x32x16_bf16 {vr(acc(ft,tt),16)}, {vr(fW(set_,ft),4)}, {vr(fX(set_,tt),4)}, {vr(acc(ft,tt),16)}")
    a("s_barrier")
    reads(0, 0, 0)
    for n in range(40):
        st, s = divmod(n, 4)
        if s < 3:
            reads(st, s+1, (n+1) & 1)
            a("s_waitcnt lgkmcnt(6)")
        else:
            a("s_waitcnt lgkmcnt(0)")
            if st < 9:
                a("s_barrier")
                reads(st+1, 0, (n+1) & 1)
        mfmas(n & 1)
    a(f"""
    s_waitcnt vmcnt(0)
    s_lshl_b32 s19, s18, 6
    s_add_u32 s19, s19, s40
    v_add_u32 v12, s19, v2
    v_mul_u32_u24 v12, 3456, v12
    s_lshl_b32 s19, s{S_CB}, 7
    s_lshl_b32 s41, s17, 6
    s_add_u32 s19, s19, s41
    v_lshlrev_b32 v13, 4, v3
    v_add3_u32 v12, v12, v13, s19
    s_mov_b32 s41, {32*3456}
    s_nop 4
    """)
    for tt in range(2):
        for ft in range(2):
            b = acc(ft, tt)
            for e in range(8):
                a(f"v_mul_f32 v{16+e}, 0xbfb8aa3b, v{b+e}")
            for e in range(8):
                a(f"v_exp_f32 v{16+e}, v{16+e}")
            for e in range(8):
                a(f"v_mul_f32 v{b+8+e}, v{b+8+e}, v{OMG+tt}")
            for e in range(8):
                a(f"v_add_f32 v{16+e}, 1.0, v{16+e}")
            for e in range(8):
                a(f"v_rcp_f32 v{16+e}, v{16+e}")
            for e in range(8):
                a(f"v_mul_f32 v{b+8+e}, v{b+8+e}, v{b+e}")
            for e in range(8):
                a(f"v_mul_f32 v{b+e}, v{b+8+e}, v{16+e}")
            for e in range(4):
                a(f"v_cvt_pk_bf16_f32 v{24+e}, v{b+2*e}, v{b+2*e+1}")
            so = "0" if tt == 0 else "s41"
            a(f"buffer_store_dwordx4 v[24:27], v12, s[{R_O}:{R_O+3}], {so} offen offset:{ft*32}")
    a("s_endpgm")
    a.label(f"{name}_loader")
    a(f"""
    s_sub_u32 s17, s{S_WAVE}, 4
    s_lshl_b32 s18, s{S_RB}, 7
    v_lshrrev_b32 v2, 3, v1
    v_and_b32 v3, 7, v1
    """)
    for i in range(4):
        a(f"""
        s_lshl_b32 s19, s17, 5
        s_add_u32 s19, s19, {8*i}
        v_add_u32 v6, s19, v2
        v_lshrrev_b32 v7, 1, v6
        v_and_b32 v7, 7, v7
        v_xor_b32 v7, v7, v3
        v_lshlrev_b32 v7, 4, v7
        v_add_u32 v6, s18, v6
        v_mul_u32_u24 v6, 1280, v6
        v_add_u32 v6, v6, v7
        v_subrev_u32 v{10+i}, {1024*i}, v6
        """)
    for isup in range(2):
        for i in range(2):
            a(f"""
            s_lshl_b32 s19, s17, 4
            s_add_u32 s19, s19, {8*i}
            v_add_u32 v6, s19, v2
            v_mul_u32_u24 v6, 3456, v6
            v_lshrrev_b32 v7, 1, v2
            v_and_b32 v7, 1, v7
            v_lshlrev_b32 v7, 1, v7
            v_xor_b32 v7, v7, v3
            v_xor_b32 v7, {4*isup}, v7
            v_lshlrev_b32 v7, 4, v7
            v_add_u32 v6, v6, v7
            s_lshl_b32 s19, s{S_CB}, 7
            v_add_u32 v6, s19, v6
            v_subrev_u32 v{14+2*isup+i}, {1024*i}, v6
            """)
    a(f"s_lshl_b32 s40, s17, 12")
    a(f"s_lshl_b32 s43, s17, 11")
    def issue(stage):
        slot = stage % NS
        a(f"s_add_u32 m0, s40, {slot*16384}")
        a(f"s_mov_b32 s41, {stage*128}")
        for i in range(4):
            a(f"buffer_load_dwordx4 v{10+i}, s[{R_X}:{R_X+3}], s41 offen offset:{1024*i} lds")
        a(f"s_add_u32 m0, s43, {65536+slot*16384}")
        a(f"s_mov_b32 s42, {stage*64*3456}")
        for i in range(2):
            a(f"buffer_load_dwordx4 v{14+i}, s[{R_WG}:{R_WG+3}], s42 offen offset:{1024*i} lds")
        a(f"s_add_u32 m0, s43, {65536+slot*16384+8192}")
        a("s_nop 0")
        for i in range(2):
            a(f"buffer_load_dwordx4 v{16+i}, s[{R_WU}:{R_WU+3}], s42 offen offset:{1024*i} lds")
    for st in range(NS):
        issue(st)
    issued = NS
    for i in range(10):
        a(f"s_waitcnt vmcnt({8*(issued-1-i)})")
        a("s_barrier")
        if i >= 1 and issued < 10:
            issue(issued); issued += 1
    a.label(L_end)
    a("s_endpgm")
    return 116
```

```python
from asmlib import *
from layout import *

def gen_g3(a, name="g3_kernel"):
    NSL = 4
    NSTEP = 19
    kernel_header(a, name)
    S_WO, S_WD, S_OUT, S_WS = 4, 6, 8, 10
    S_WAVE, S_RB, S_CB = 12, 13, 14
    R_O, R_H, R_WO, R_WD, R_OUT = 16, 20, 24, 28, 32
    S_LB = 36
    L_end = name + "_end"
    a(f"""
    s_cmp_ge_u32 s2, 256
    s_cbranch_scc1 {L_end}
    s_load_dwordx2 s[4:5], s[0:1], 16
    s_load_dwordx2 s[6:7], s[0:1], 48
    s_load_dwordx2 s[8:9], s[0:1], 64
    s_load_dwordx2 s[10:11], s[0:1], 80
    v_lshrrev_b32 v2, 6, v0
    v_and_b32 v1, 63, v0
    s_and_b32 s15, s2, 7
    v_readfirstlane_b32 s{S_WAVE}, v2
    s_lshr_b32 s37, s2, 3
    s_lshl_b32 s{S_RB}, s15, 2
    s_lshr_b32 s38, s37, 3
    s_add_u32 s{S_RB}, s{S_RB}, s38
    s_and_b32 s{S_CB}, s37, 7
    s_waitcnt lgkmcnt(0)
    """)
    srd(a, R_O, S_WS, WS_O, O_BYTES)
    srd(a, R_H, S_WS, WS_H, H_BYTES)
    srd(a, R_WO, S_WO, 0, WO_BYTES)
    srd(a, R_WD, S_WD, 0, WD_BYTES)
    srd(a, R_OUT, S_OUT, 0, OUT_BYTES)
    VXO, VXH, VWD, VTR = 4, 8, 12, 17
    XF = 20
    WF = 84
    ACC = 104
    T = 184
    a(f"""
    s_mul_i32 s{S_LB}, s{S_WAVE}, {NSL*5120}
    v_and_b32 v2, 15, v1
    v_lshrrev_b32 v3, 4, v1
    s_lshl_b32 s37, s{S_RB}, 6
    v_lshlrev_b32 v{T+1}, 4, v3
    """)
    for tt in range(4):
        a(f"""
        v_add_u32 v{T}, s37, v2
        v_add_u32 v{T}, {16*tt}, v{T}
        v_mul_u32_u24 v{VXO+tt}, 1280, v{T}
        v_add_u32 v{VXO+tt}, v{VXO+tt}, v{T+1}
        v_mul_u32_u24 v{VXH+tt}, 3456, v{T}
        v_add_u32 v{VXH+tt}, v{VXH+tt}, v{T+1}
        """)
    a(f"s_mul_i32 s38, s{S_CB}, 160")
    for i in range(5):
        a(f"""
        v_add_u32 v{T}, {64*i}, v1
        v_mul_u32_u24 v{T+1}, 6554, v{T}
        v_lshrrev_b32 v{T+1}, 16, v{T+1}
        v_mul_u32_u24 v{T+2}, 10, v{T+1}
        v_sub_u32 v{T+2}, v{T}, v{T+2}
        v_lshrrev_b32 v{T+3}, 4, v{T+1}
        v_lshlrev_b32 v{T+3}, 4, v{T+3}
        v_lshrrev_b32 v{T+4}, 2, v{T+1}
        v_and_b32 v{T+4}, 1, v{T+4}
        v_lshlrev_b32 v{T+4}, 3, v{T+4}
        v_add_u32 v{T+3}, v{T+3}, v{T+4}
        v_lshrrev_b32 v{T+4}, 3, v{T+1}
        v_and_b32 v{T+4}, 1, v{T+4}
        v_lshlrev_b32 v{T+4}, 2, v{T+4}
        v_add_u32 v{T+3}, v{T+3}, v{T+4}
        v_and_b32 v{T+4}, 3, v{T+1}
        v_add_u32 v{T+3}, v{T+3}, v{T+4}
        v_mul_u32_u24 v{T+3}, 1280, v{T+3}
        v_lshlrev_b32 v{T+2}, 4, v{T+2}
        v_add3_u32 v{T+3}, v{T+3}, v{T+2}, s38
        v_subrev_u32 v{VWD+i}, {1024*i if i < 4 else 0}, v{T+3}
        """)
    a(f"""
    v_lshrrev_b32 v{T}, 1, v3
    v_lshlrev_b32 v{T}, 4, v{T}
    v_and_b32 v{T+1}, 1, v3
    v_lshlrev_b32 v{T+1}, 2, v{T+1}
    v_lshrrev_b32 v{T+2}, 2, v2
    v_add3_u32 v{T}, v{T}, v{T+1}, v{T+2}
    v_mul_u32_u24 v{T}, 160, v{T}
    v_and_b32 v{T+1}, 3, v2
    v_lshlrev_b32 v{T+1}, 3, v{T+1}
    v_add3_u32 v{VTR}, v{T}, v{T+1}, s{S_LB}
    """)
    for r in range(80):
        a(f"v_mov_b32 v{ACC+r}, 0")
    def issue(n):
        slot = n % NSL
        isO = n < 5
        ku = n if isO else n-5
        a(f"s_lshl_b32 s40, s{S_WAVE}, 6")
        a(f"s_add_u32 s40, s40, {ku*256}")
        a(f"s_mul_i32 s41, s40, 640")
        a(f"s_add_u32 m0, s{S_LB}, {slot*5120}")
        RX = R_O if isO else R_H
        VX = VXO if isO else VXH
        RW = R_WO if isO else R_WD
        for tt in range(4):
            a(f"buffer_load_dwordx4 {vr(XF+slot*16+tt*4,4)}, v{VX+tt}, s[{RX}:{RX+3}], s40 offen")
        for i in range(4):
            a(f"buffer_load_dwordx4 v{VWD+i}, s[{RW}:{RW+3}], s41 offen offset:{1024*i} lds")
        a(f"s_add_u32 m0, s{S_LB}, {slot*5120+4096}")
        a("s_nop 0")
        a(f"buffer_load_dwordx4 v{VWD+4}, s[{RW}:{RW+3}], s41 offen lds")
    for n in range(NSL):
        issue(n)
    for n in range(NSTEP):
        slot = n % NSL
        inflight_after = min(NSTEP-1, n+NSL-1) - n
        a(f"s_waitcnt vmcnt({9*inflight_after})")
        for ft in range(5):
            for ab in range(2):
                a(f"ds_read_b64_tr_b16 {vr(WF+ft*4+2*ab,2)}, v{VTR} offset:{slot*5120+ab*1280+ft*32}")
        for ft in range(5):
            a(f"s_waitcnt lgkmcnt({8-2*ft})")
            for tt in range(4):
                b = ACC + (ft*4+tt)*4
                a(f"v_mfma_f32_16x16x32_bf16 {vr(b,4)}, {vr(WF+ft*4,4)}, {vr(XF+slot*16+tt*4,4)}, {vr(b,4)}")
        if n + NSL < NSTEP:
            issue(n + NSL)
    RS = 336
    a(f"""
    s_nop 7
    s_barrier
    s_mul_i32 s40, s{S_WAVE}, {64*RS}
    v_mul_u32_u24 v{T}, {RS}, v2
    v_lshlrev_b32 v{T+1}, 4, v3
    v_add3_u32 v{T}, v{T}, v{T+1}, s40
    """)
    for ft in range(5):
        for tt in range(4):
            b = ACC + (ft*4+tt)*4
            a(f"ds_write_b128 v{T}, {vr(b,4)} offset:{tt*16*RS+ft*64}")
    a("s_waitcnt lgkmcnt(0)")
    a("s_barrier")
    for rnd in range(3):
        lab = a.uid(name + "_skip")
        a(f"""
        v_add_u32 v{T}, {256*rnd}, v0
        v_mul_u32_u24 v{T+1}, 6554, v{T}
        v_lshrrev_b32 v{T+1}, 16, v{T+1}
        v_mul_u32_u24 v{T+2}, 10, v{T+1}
        v_sub_u32 v{T+2}, v{T}, v{T+2}
        v_mul_u32_u24 v{T+3}, {RS}, v{T+1}
        v_lshlrev_b32 v{T+4}, 5, v{T+2}
        v_add_u32 v{T+3}, v{T+3}, v{T+4}
        s_lshl_b32 s40, s{S_RB}, 6
        v_add_u32 v{T+1}, s40, v{T+1}
        v_mul_u32_u24 v{T+1}, 1280, v{T+1}
        v_lshlrev_b32 v{T+2}, 4, v{T+2}
        v_add3_u32 v{T+1}, v{T+1}, v{T+2}, s38
        """)
        if rnd == 2:
            a(f"s_cmp_ge_u32 s{S_WAVE}, 2")
            a(f"s_cbranch_scc1 {L_end}")
        for w in range(4):
            a(f"ds_read_b128 {vr(20+8*w,4)}, v{T+3} offset:{w*64*RS}")
            a(f"ds_read_b128 {vr(24+8*w,4)}, v{T+3} offset:{w*64*RS+16}")
        a("s_waitcnt lgkmcnt(0)")
        for e in range(8):
            a(f"v_add_f32 v{20+e}, v{20+e}, v{28+e}")
            a(f"v_add_f32 v{36+e}, v{36+e}, v{44+e}")
        for e in range(8):
            a(f"v_add_f32 v{20+e}, v{20+e}, v{36+e}")
        for e in range(4):
            a(f"v_cvt_pk_bf16_f32 v{56+e}, v{20+2*e}, v{21+2*e}")
        a(f"buffer_store_dwordx4 v[56:59], v{T+1}, s[{R_OUT}:{R_OUT+3}], 0 offen")
        a("s_nop 1")
    a.label(L_end)
    a("s_endpgm")
    return 192
G3_LDS = 4*64*336
```

```python
import struct, math
def f2u(x): return struct.unpack("<I", struct.pack("<f", x))[0]
S, D, H, DH, F = 2048, 640, 32, 20, 1728
X_BYTES = S*D*2
WQKV_BYTES = D*3*D*2
WO_BYTES = D*D*2
WG_BYTES = D*F*2
WD_BYTES = F*D*2
OUT_BYTES = S*D*2
Q_TS, Q_HS = 1280, 64*1280
KV_TS, KV_HS = 2560, 64*2560
WS_Q = 0
Q_BYTES = H*Q_HS
WS_KV = 0x280000
KV_BYTES = H*KV_HS
WS_G = 0x780000
G_BYTES = S*8
WS_O = 0x800000
O_BYTES = S*D*2
WS_H = 0xA80000
H_BYTES = S*F*2
QSCALE = math.log2(math.e) / math.sqrt(DH)
QSCALE_BITS = hex(f2u(QSCALE))
```

```python
from build_all import assemble
from asmlib import *
from g1 import gen_g1
from g2 import gen_g2
import g3, at
def gen_nop(a, name):
    kernel_header(a, name)
    a("s_endpgm")
    return 8
base = [("g1_kernel", gen_g1, 256, 512, 131072),
         ("g2_kernel", gen_g2, 448, 512, 131072),
         ("at_kernel", at.gen_at, 256, 512, at.AT_LDS),
         ("g3_kernel", g3.gen_g3, 256, 256, g3.G3_LDS)]
nop = ("nop_kernel", gen_nop, 1, 64, 0)
open("v_base.s","w").write(assemble(base))
open("v_nop4.s","w").write(assemble(base + [nop]*4))
open("v_nop1.s","w").write(assemble(base + [nop]*1))
open("v_dup.s","w").write(assemble(base + [base[3]]))
```

```python
class Asm:
    def __init__(self):
        self.lines = []
        self._uid = 0
    def __call__(self, *ls):
        for l in ls:
            for s in l.split("\n"):
                s = s.strip()
                if not s:
                    continue
                self.lines.append("    " + s)
    def label(self, name):
        self.lines.append(name + ":")
    def raw(self, s):
        self.lines.append(s)
    def uid(self, p="L"):
        self._uid += 1
        return f"{p}_{self._uid}"
    def text(self):
        import re
        for l in self.lines:
            m = re.search(r"offset:(-?\d+)", l)
            if m:
                o = int(m.group(1)); op = l.split()[0]
                if op.startswith("buffer_"): assert 0 <= o <= 4095, l
                elif op.startswith("ds_"): assert 0 <= o <= 65535, l
                elif op.startswith("global_"): assert -4096 <= o <= 4095, l
        return "\n".join(self.lines) + "\n"

def vr(b, n):
    return f"v[{b}:{b+n-1}]" if n > 1 else f"v{b}"
def sr(b, n):
    return f"s[{b}:{b+n-1}]" if n > 1 else f"s{b}"
def ar(b, n):
    return f"a[{b}:{b+n-1}]" if n > 1 else f"a{b}"

def srd(a, dst, ptr, off, size):
    if off:
        a(f"s_add_u32 s{dst}, s{ptr}, {off}")
        a(f"s_addc_u32 s{dst+1}, s{ptr+1}, 0")
    else:
        a(f"s_mov_b32 s{dst}, s{ptr}")
        a(f"s_mov_b32 s{dst+1}, s{ptr+1}")
    a(f"s_mov_b32 s{dst+2}, {size}")
    a(f"s_mov_b32 s{dst+3}, 0x20000")

def kernel_header(a, name):
    a.raw(f".globl {name}")
    a.raw(".p2align 8")
    a.raw(f".type {name},@function")
    a.label(name)

def kernel_desc(name, nvgpr, nsgpr=96, accum=None):
    if accum is None:
        accum = (nvgpr + 3) // 4 * 4
    return f""".amdhsa_kernel {name}
  .amdhsa_next_free_vgpr {nvgpr}
  .amdhsa_next_free_sgpr {nsgpr}
  .amdhsa_accum_offset {accum}
  .amdhsa_group_segment_fixed_size 0
  .amdhsa_kernarg_size 88
  .amdhsa_user_sgpr_count 2
  .amdhsa_user_sgpr_kernarg_segment_ptr 1
  .amdhsa_system_sgpr_workgroup_id_x 1
  .amdhsa_float_denorm_mode_32 3
  .amdhsa_float_denorm_mode_16_64 3
.end_amdhsa_kernel
"""


PROF = {"on": False, "slot": 0}
PROF_WS = 0x4000000
def stamp(a, idx, cyc=False):
    if not PROF["on"]: return
    a(f"s_memrealtime s[{72+2*idx}:{73+2*idx}]")
    a("s_waitcnt lgkmcnt(0)")
def stampc(a, idx):
    if not PROF["on"]: return
    a(f"s_memtime s[{72+2*idx}:{73+2*idx}]")
    a("s_waitcnt lgkmcnt(0)")
def dump_stamps(a, n, wave_sgpr, tmpv=(60, 61, 62)):
    if not PROF["on"]: return
    lab = a.uid("prof")
    a("s_load_dwordx2 s[68:69], s[0:1], 80")
    a("s_waitcnt lgkmcnt(0)")
    a(f"s_add_u32 s64, s68, {PROF_WS + PROF['slot']*0x80000}")
    a("s_addc_u32 s65, s69, 0")
    a("s_mov_b32 s66, 0x80000")
    a("s_mov_b32 s67, 0x20000")
    a("s_lshl_b32 s68, s2, 4")
    a(f"s_add_u32 s68, s68, s{wave_sgpr}")
    a("s_lshl_b32 s68, s68, 6")
    a("s_mov_b64 exec, 1")
    a(f"v_mov_b32 v{tmpv[1]}, s68")
    for i in range(n):
        a(f"v_mov_b32 v{tmpv[0]}, s{72+2*i}")
        a(f"buffer_store_dword v{tmpv[0]}, v{tmpv[1]}, s[64:67], 0 offen offset:{4*i}")
        a("s_nop 1")
    a("s_waitcnt vmcnt(0)")
```

```python
from asmlib import *
HEADER = open("gated_mix__mha_block__swiglu_ffn__prompt.s.ref").read().split("; Override launch")[0]
KNAME = "gated_mix__mha_block__swiglu_ffn__prompt_kernel"
def assemble_single(gen, lds, nsgpr=100):
    a = Asm()
    nv = gen(a, KNAME)
    txt = HEADER + f"; @launch grid=(256,1,1) block=(512,1,1) lds={lds}\n"
    txt += '.amdgcn_target "amdgcn-amd-amdhsa--gfx950"\n.text\n'
    txt += a.text()
    txt += '.section .rodata,"a"\n.p2align 6\n' + kernel_desc(KNAME, nv, nsgpr)
    return txt
```

```python
import struct, math
def f2u(x): return struct.unpack("<I", struct.pack("<f", x))[0]
S, D, H, DH, F = 2048, 640, 32, 20, 1728
X_BYTES = S*D*2
WQKV_BYTES = D*3*D*2
WO_BYTES = D*D*2
WG_BYTES = D*F*2
WD_BYTES = F*D*2
OUT_BYTES = S*D*2
Q_TS, Q_HS = 1280, 64*1280
KV_TS, KV_HS = 2560, 64*2560
O_TS, O_HS = 1536, 64*1536
WS_Q = 0
Q_BYTES = H*Q_HS
WS_KV = 0x280000
KV_BYTES = H*KV_HS
WS_G = 0x780000
G_BYTES = S*8
WS_O = 0x800000
O_BYTES = H*O_HS
WS_H = 0xB00000
H_GS = S*32
H_BYTES = 108*H_GS
QSCALE = math.log2(math.e) / math.sqrt(DH)
QSCALE_BITS = hex(f2u(QSCALE))
C_QKV, C_H, C_O = 0, 16, 32
N_QKV, N_H, N_O = 112, 144, 32
```

```python
from mega_common import *
import p1, p2, p3

def gen_mega(a, name, phases=("p1", "p2", "p3")):
    kernel_header(a, name)
    L_end = name + "_end"
    a(f"""
    s_cmp_ge_u32 s2, 256
    s_cbranch_scc1 {L_end}
    """)
    stamp(a, 0)
    a(f"""
    s_load_dwordx4 s[4:7], s[0:1], 0
    s_load_dwordx2 s[8:9], s[0:1], 16
    s_load_dwordx4 s[12:15], s[0:1], 40
    s_load_dwordx2 s[10:11], s[0:1], 32
    s_load_dwordx4 s[16:19], s[0:1], 56
    s_load_dwordx4 s[20:23], s[0:1], 72
    v_lshrrev_b32 v2, 6, v0
    v_and_b32 v{V_LANE}, 63, v0
    s_nop 0
    v_readfirstlane_b32 s{S_WAVE}, v2
    s_waitcnt lgkmcnt(0)
    """)
    p1.gen_p1(a, "after_p1")
    a.label("after_p1")
    stamp(a, 3)
    if "p2" in phases:
        p2.gen_p2(a, "after_p2")
        a.label("after_p2")
        stamp(a, 6)
    if "p3" in phases:
        p3.gen_p3(a, "after_p3")
        a.label("after_p3")
    if PROF["on"]:
        a("s_waitcnt vmcnt(0)")
        stamp(a, 8)
        dump_stamps(a, 9, S_WAVE)
    a.label(L_end)
    a("s_endpgm")
    return 256
```

```python
from asmlib import *
from layout2 import *

S_KA = 0
S_ID = 2
S_WAVE = 3
S_PX, S_PWQKV, S_PWO = 4, 6, 8
S_PWG, S_PWU, S_PWD, S_PGW = 10, 12, 14, 16
S_POUT, S_PDBG, S_PWS = 18, 20, 22
V_TID, V_LANE = 0, 1

def signal(a, counter_dword, tmpv=2, tmps=24):
    lab = a.uid("sig")
    a(f"s_cmp_lg_u32 s{S_WAVE}, 0")
    a(f"s_cbranch_scc1 {lab}")
    a(f"s_mov_b64 s[{tmps}:{tmps+1}], exec")
    a("s_mov_b64 exec, 1")
    a(f"v_mov_b32 v{tmpv}, {4*counter_dword}")
    a(f"v_mov_b32 v{tmpv+1}, 1")
    a(f"global_atomic_add v{tmpv}, v{tmpv+1}, s[{S_PDBG}:{S_PDBG+1}]")
    a(f"s_mov_b64 exec, s[{tmps}:{tmps+1}]")
    a.label(lab)

def wait_flag(a, counter_sgpr_or_const, target, tmpv=2, tmps=24):
    lab = a.uid("wf")
    a(f"s_cmp_lg_u32 s{S_WAVE}, 0")
    a(f"s_cbranch_scc1 {lab}_done")
    a(f"s_mov_b64 s[{tmps}:{tmps+1}], exec")
    a("s_mov_b64 exec, 1")
    a(f"v_mov_b32 v{tmpv}, {counter_sgpr_or_const}")
    a(f"s_mov_b32 s{tmps+2}, 0x40000")
    a.label(lab)
    a(f"global_load_dword v{tmpv+1}, v{tmpv}, s[{S_PDBG}:{S_PDBG+1}] sc1")
    a("s_waitcnt vmcnt(0)")
    a(f"v_readfirstlane_b32 s{tmps+3}, v{tmpv+1}")
    a(f"s_sub_u32 s{tmps+2}, s{tmps+2}, 1")
    a(f"s_cmp_eq_u32 s{tmps+2}, 0")
    a(f"s_cbranch_scc1 {lab}_out")
    a(f"s_cmp_ge_u32 s{tmps+3}, {target}")
    a(f"s_cbranch_scc1 {lab}_out")
    a("s_sleep 2")
    a(f"s_branch {lab}")
    a.label(lab + "_out")
    a(f"s_mov_b64 exec, s[{tmps}:{tmps+1}]")
    a.label(lab + "_done")
```

```python
from mega_common import *

OPT = {}
NS = 5
SLOT = 28736
NSTAGE = 20
R_X, R_WA, R_WB, R_OUT = 28, 32, 36, 40
S_RB, S_CB, S_SEC, S_TW, S_FW, S_HASB = 44, 45, 46, 47, 48, 49
S_DSLOT, S_SOX, S_SOW, S_LA, S_LB, S_LX, S_CNT, S_DELTA, S_RSLOT = 50, 51, 52, 54, 55, 56, 57, 58, 59
T0, T1, T2, T3 = 60, 61, 62, 63
VXD0, VXD1, VWA, VWB = 4, 5, 6, 7
VXR0, VXR1, VWR = 8, 9, 10
FR = 16
ACC = 56
VT = 152
def fX(s, tt): return FR + s*20 + tt*4
def fW(s, t): return FR + s*20 + 8 + t*4
def acc(t, tt): return ACC + (t*2+tt)*16

def dma_issue_list(wstep):
    g = []
    g.append([f"s_add_u32 m0, s{S_DSLOT}, s{S_LX}", "s_nop 0",
              f"buffer_load_dwordx4 v{VXD0}, s[{R_X}:{R_X+3}], s{S_SOX} offen lds"])
    g.append([f"buffer_load_dwordx4 v{VXD1}, s[{R_X}:{R_X+3}], s{S_SOX} offen offset:1024 lds"])
    g.append([f"s_add_u32 m0, s{S_DSLOT}, s{S_LA}", f"s_add_u32 s{S_SOX}, s{S_SOX}, 64",
              f"buffer_load_dwordx4 v{VWA}, s[{R_WA}:{R_WA+3}], s{S_SOW} offen lds"])
    return g
def dma_issue_b(a, wstep):
    lab = a.uid("nob")
    a(f"s_cmp_eq_u32 s{S_HASB}, 0")
    a(f"s_cbranch_scc1 {lab}")
    a(f"s_add_u32 m0, s{S_DSLOT}, s{S_LB}")
    a("s_nop 0")
    a(f"buffer_load_dwordx4 v{VWB}, s[{R_WB}:{R_WB+3}], s{S_SOW} offen lds")
    a.label(lab)
    a(f"s_add_u32 s{S_SOW}, s{S_SOW}, {wstep}")
    a(f"s_add_u32 s{S_DSLOT}, s{S_DSLOT}, {SLOT}")
    a(f"s_cmp_ge_u32 s{S_DSLOT}, {NS*SLOT}")
    a(f"s_cselect_b32 s{S_DSLOT}, 0, s{S_DSLOT}")
def dma_stage(a, wstep):
    for grp in dma_issue_list(wstep):
        for l in grp: a(l)
    dma_issue_b(a, wstep)
def wait_vm(a, nst):
    if nst == 0:
        a("s_waitcnt vmcnt(0)"); return
    lab = a.uid("wv")
    a(f"s_cmp_eq_u32 s{S_HASB}, 0")
    a(f"s_cbranch_scc1 {lab}_3")
    a(f"s_waitcnt vmcnt({4*nst})")
    a(f"s_branch {lab}_e")
    a.label(lab + "_3")
    a(f"s_waitcnt vmcnt({3*nst})")
    a.label(lab + "_e")

def mainloop(a, nt, orient, rsl, wstep):
    nrd = 2 + 2*nt
    def reads(s, set_):
        if OPT.get("noreads"): return
        for t in range(nt):
            for ab in range(2):
                a(f"ds_read_b64_tr_b16 {vr(fW(set_,t)+2*ab,2)}, v{VWR+t} offset:{s*16*rsl+ab*4*rsl}")
        for tt in range(2):
            a(f"ds_read_b128 {vr(fX(set_,tt),4)}, v{VXR0+s} offset:{tt*2048}")
    def mf(set_):
        out = []
        for t in range(nt):
            for tt in range(2):
                A, B = (fW(set_,t), fX(set_,tt)) if orient == "T" else (fX(set_,tt), fW(set_,t))
                out.append(f"v_mfma_f32_32x32x16_bf16 {vr(acc(t,tt),16)}, {vr(A,4)}, {vr(B,4)}, {vr(acc(t,tt),16)}")
        return out
    def advance():
        a(f"s_add_u32 s{S_RSLOT}, s{S_RSLOT}, {SLOT}")
        a(f"s_cmp_ge_u32 s{S_RSLOT}, {NS*SLOT}")
        a(f"s_cselect_b32 s{S_DELTA}, {(-(NS-1)*SLOT) & 0xffffffff}, s{T3}")
        a(f"s_cselect_b32 s{S_RSLOT}, 0, s{S_RSLOT}")
        for r in [VXR0, VXR1] + [VWR+t for t in range(nt)]:
            a(f"v_add_u32 v{r}, s{S_DELTA}, v{r}")
    def stage(issue, nst_wait, last):
        reads(1, 1)
        if not last: advance()
        a(f"s_waitcnt lgkmcnt({nrd})")
        for m in mf(0): a(m)
        a("s_waitcnt lgkmcnt(0)")
        ms = mf(1)
        npre = len(ms)//2
        for m in ms[:npre]: a(m)
        rest = ms[npre:]
        if not last:
            if not OPT.get("nodma"): wait_vm(a, nst_wait)
            if not OPT.get("nobar"): a("s_barrier")
            reads(0, 0)
        if issue and not OPT.get("nodma"):
            grps = dma_issue_list(wstep)
            for k, m in enumerate(rest):
                a(m)
                if k < len(grps):
                    for l in grps[k]: a(l)
            for k in range(len(rest), len(grps)):
                for l in grps[k]: a(l)
            dma_issue_b(a, wstep)
        else:
            for m in rest: a(m)
    a(f"s_mov_b32 s{T3}, {SLOT}")
    a(f"s_mov_b32 s{S_RSLOT}, 0")
    wait_vm(a, NS-1)
    a("s_barrier")
    stamp(a, 1)
    reads(0, 0)
    a(f"s_mov_b32 s{S_CNT}, {NSTAGE-NS}")
    lab = a.uid("p1loop")
    a.label(lab)
    stage(True, NS-2, False)
    a(f"s_sub_u32 s{S_CNT}, s{S_CNT}, 1")
    a(f"s_cmp_lg_u32 s{S_CNT}, 0")
    a(f"s_cbranch_scc1 {lab}")
    for i in range(NSTAGE-NS, NSTAGE):
        stage(False, NSTAGE-1-(i+1), i == NSTAGE-1)
    a("s_nop 15")
    stamp(a, 2)

def x_dma_setup(a):
    a(f"""
    v_lshrrev_b32 v{VT}, 2, v{V_LANE}
    s_lshl_b32 s{T0}, s{S_RB}, 8
    s_lshl_b32 s{T1}, s{S_WAVE}, 5
    s_add_u32 s{T0}, s{T0}, s{T1}
    v_add_u32 v{VT}, s{T0}, v{VT}
    v_mul_u32_u24 v{VT}, 1280, v{VT}
    v_lshrrev_b32 v{VT+1}, 4, v{V_LANE}
    v_and_b32 v{VT+2}, 3, v{V_LANE}
    v_xor_b32 v{VT+1}, v{VT+1}, v{VT+2}
    v_lshlrev_b32 v{VT+1}, 4, v{VT+1}
    v_add_u32 v{VXD0}, v{VT}, v{VT+1}
    v_add_u32 v{VXD1}, {16*1280-1024}, v{VXD0}
    s_lshl_b32 s{S_LX}, s{S_WAVE}, 11
    s_mov_b32 s{S_SOX}, 0
    s_mov_b32 s{S_SOW}, 0
    s_mov_b32 s{S_DSLOT}, 0
    """)
def w_voff(a, dst, wi_sgpr, cpr, magic, rowstride, colbytes_sgpr):
    a(f"""
    s_lshl_b32 s{T1}, s{wi_sgpr}, 6
    v_add_u32 v{VT}, s{T1}, v{V_LANE}
    v_mul_u32_u24 v{VT+1}, {magic}, v{VT}
    v_lshrrev_b32 v{VT+1}, 16, v{VT+1}
    v_mul_u32_u24 v{VT+2}, {cpr}, v{VT+1}
    v_sub_u32 v{VT+2}, v{VT}, v{VT+2}
    v_mul_u32_u24 v{VT+1}, {rowstride}, v{VT+1}
    v_lshlrev_b32 v{VT+2}, 4, v{VT+2}
    v_add3_u32 v{dst}, v{VT+1}, v{VT+2}, s{colbytes_sgpr}
    """)
def read_setup_common(a):
    a(f"""
    v_and_b32 v2, 31, v{V_LANE}
    v_lshrrev_b32 v3, 5, v{V_LANE}
    s_and_b32 s{S_TW}, s{S_WAVE}, 3
    s_lshr_b32 s{S_FW}, s{S_WAVE}, 2
    s_lshl_b32 s{T0}, s{S_TW}, 6
    v_add_u32 v{VT}, s{T0}, v2
    v_lshrrev_b32 v{VT+1}, 2, v{VT}
    v_and_b32 v{VT+1}, 3, v{VT+1}
    v_xor_b32 v{VT+1}, v{VT+1}, v3
    v_lshlrev_b32 v{VT+1}, 4, v{VT+1}
    v_lshlrev_b32 v{VT}, 6, v{VT}
    v_add_u32 v{VXR0}, v{VT}, v{VT+1}
    v_xor_b32 v{VXR1}, 32, v{VXR0}
    v_lshrrev_b32 v{VT}, 4, v{V_LANE}
    v_and_b32 v{VT+1}, 15, v{V_LANE}
    v_lshrrev_b32 v{VT+2}, 2, v{VT+1}
    v_and_b32 v{VT+3}, 3, v{VT+1}
    v_and_b32 v{VT+4}, 1, v{VT}
    v_lshrrev_b32 v{VT}, 1, v{VT}
    v_lshlrev_b32 v{VT}, 3, v{VT}
    v_add_u32 v{VT}, v{VT}, v{VT+2}
    """)
def zero_acc(a, n):
    for r in range(n):
        a(f"v_mov_b32 v{ACC+r}, 0")

def gen_p1(a, L_next):
    n = "p1"
    a(f"""
    s_and_b32 s{T0}, s{S_ID}, 7
    s_lshr_b32 s{T1}, s{S_ID}, 3
    s_and_b32 s{S_RB}, s{T0}, 1
    s_lshl_b32 s{S_RB}, s{S_RB}, 2
    s_and_b32 s{T2}, s{T1}, 3
    s_add_u32 s{S_RB}, s{S_RB}, s{T2}
    s_lshr_b32 s{T0}, s{T0}, 1
    s_lshr_b32 s{T1}, s{T1}, 2
    s_cmp_ge_u32 s{T1}, 3
    s_cbranch_scc1 {n}_notqkv
    s_mul_i32 s{S_CB}, s{T0}, 3
    s_add_u32 s{S_CB}, s{S_CB}, s{T1}
    """)
    srd(a, R_X, S_PX, 0, X_BYTES)
    srd(a, R_WA, S_PWQKV, 0, WQKV_BYTES)
    srd(a, R_WB, S_PWQKV, 0, WQKV_BYTES)
    x_dma_setup(a)
    a(f"""
    s_mul_i32 s{T2}, s{S_CB}, 320
    s_cmp_ge_u32 s{S_WAVE}, 6
    s_cselect_b32 s{S_HASB}, 1, 0
    s_lshl_b32 s{S_LA}, s{S_WAVE}, 10
    s_add_u32 s{S_LA}, s{S_LA}, 16384
    s_add_u32 s{S_LB}, s{S_LA}, 2048
    s_add_u32 s{T3}, s{S_WAVE}, 2
    """)
    w_voff(a, VWA, S_WAVE, 20, 3277, 3840, T2)
    w_voff(a, VWB, T3, 20, 3277, 3840, T2)
    WSTEP_Q = 32*3840
    for st in range(NS):
        dma_stage(a, WSTEP_Q)
    read_setup_common(a)
    a(f"s_lshr_b32 s{S_SEC}, s{S_CB}, 2")
    a(f"v_mul_u32_u24 v{VT}, 320, v{VT}")
    a(f"v_add_u32 v{VT}, 16384, v{VT}")
    a(f"v_lshlrev_b32 v{VT+4}, 2, v{VT+4}")
    a(f"v_add_u32 v{VT+3}, v{VT+3}, v{VT+4}")
    a(f"s_cmp_eq_u32 s{S_SEC}, 2")
    a(f"s_cbranch_scc1 {n}_v")
    a(f"""
    v_lshrrev_b32 v{VT+1}, 2, v{VT+3}
    v_mul_u32_u24 v{VT+1}, 160, v{VT+1}
    v_and_b32 v{VT+2}, 1, v{VT+3}
    v_lshlrev_b32 v{VT+2}, 4, v{VT+2}
    v_bfe_u32 v{VT+4}, v{VT+3}, 1, 1
    v_lshlrev_b32 v{VT+4}, 3, v{VT+4}
    v_add3_u32 v{VT+1}, v{VT+1}, v{VT+2}, v{VT+4}
    v_add_u32 v{VT+1}, v{VT+1}, v{VT}
    s_cmp_eq_u32 s{S_FW}, 0
    s_cbranch_scc0 {n}_qk1
    v_mov_b32 v{VWR}, v{VT+1}
    v_add_u32 v{VWR+1}, 40, v{VT+1}
    v_add_u32 v{VWR+2}, 80, v{VT+1}
    """)
    def qk_out_setup():
        a(f"s_cmp_eq_u32 s{S_SEC}, 0")
        a(f"s_mov_b32 s{T0}, {WS_KV}")
        a(f"s_mov_b32 s{T1}, {KV_BYTES}")
        a(f"s_mov_b32 s{S_LA}, {KV_HS}")
        a(f"s_mov_b32 s{S_LB}, {KV_TS}")
        a(f"s_cselect_b32 s{T0}, {WS_Q}, s{T0}")
        a(f"s_cselect_b32 s{T1}, {Q_BYTES}, s{T1}")
        a(f"s_cselect_b32 s{S_LA}, {Q_HS}, s{S_LA}")
        a(f"s_cselect_b32 s{S_LB}, {Q_TS}, s{S_LB}")
        a(f"s_cselect_b32 s{S_LX}, {QSCALE_BITS}, 1.0")
        a(f"s_add_u32 s{R_OUT}, s{S_PWS}, s{T0}")
        a(f"s_addc_u32 s{R_OUT+1}, s{S_PWS+1}, 0")
        a(f"s_mov_b32 s{R_OUT+2}, s{T1}")
        a(f"s_mov_b32 s{R_OUT+3}, 0x20000")
        a(f"""
        s_and_b32 s{T0}, s{S_CB}, 3
        s_lshl_b32 s{T0}, s{T0}, 3
        s_mul_i32 s{T0}, s{T0}, s{S_LA}
        s_lshl_b32 s{T1}, s{S_RB}, 3
        s_lshl_b32 s{T2}, s{S_TW}, 1
        s_add_u32 s{T1}, s{T1}, s{T2}
        s_mul_i32 s{T1}, s{T1}, s{S_LB}
        s_add_u32 s{S_SOX}, s{T0}, s{T1}
        v_lshlrev_b32 v{VT}, 4, v{V_LANE}
        """)
    def qk_main_store(t, mt):
        for tt in range(2):
            b = acc(t, tt)
            for r in range(16):
                a(f"v_mul_f32 v{b+r}, s{S_LX}, v{b+r}")
            for hsel in range(2):
                for e in range(4):
                    a(f"v_cvt_pk_bf16_f32 v{VT+4+e}, v{b+8*hsel+2*e}, v{b+8*hsel+2*e+1}")
                a(f"s_mul_i32 s{T0}, s{S_LA}, {mt+4*hsel}")
                a(f"s_add_u32 s{T0}, s{T0}, s{S_SOX}")
                if tt: a(f"s_add_u32 s{T0}, s{T0}, s{S_LB}")
                a(f"buffer_store_dwordx4 {vr(VT+4,4)}, v{VT}, s[{R_OUT}:{R_OUT+3}], s{T0} offen sc1")
                a("s_nop 1")
    zero_acc(a, 96)
    mainloop(a, 3, "T", 320, WSTEP_Q)
    qk_out_setup()
    for t in range(3): qk_main_store(t, t)
    a(f"s_branch {n}_sigq")
    a.label(f"{n}_qk1")
    a(f"""
    v_add_u32 v{VWR}, 120, v{VT+1}
    v_mul_u32_u24 v{VT+1}, 40, v{VT+3}
    v_add_u32 v{VT+1}, v{VT+1}, v{VT}
    v_add_u32 v{VWR+1}, 32, v{VT+1}
    """)
    zero_acc(a, 64)
    mainloop(a, 2, "T", 320, WSTEP_Q)
    qk_out_setup()
    qk_main_store(0, 3)
    a(f"""
    v_mul_lo_u32 v{VT+1}, v3, s{S_LA}
    v_lshlrev_b32 v{VT+2}, 3, v2
    v_add_u32 v{VT+1}, v{VT+1}, v{VT+2}
    v_add_u32 v{VT+1}, 1024, v{VT+1}
    """)
    for tt in range(2):
        b = acc(1, tt)
        for r in range(16):
            a(f"v_mul_f32 v{b+r}, s{S_LX}, v{b+r}")
        for q in range(4):
            a(f"v_cvt_pk_bf16_f32 v{VT+4}, v{b+4*q}, v{b+4*q+1}")
            a(f"v_cvt_pk_bf16_f32 v{VT+5}, v{b+4*q+2}, v{b+4*q+3}")
            a(f"s_mul_i32 s{T0}, s{S_LA}, {2*q}")
            a(f"s_add_u32 s{T0}, s{T0}, s{S_SOX}")
            if tt: a(f"s_add_u32 s{T0}, s{T0}, s{S_LB}")
            a(f"buffer_store_dwordx2 {vr(VT+4,2)}, v{VT+1}, s[{R_OUT}:{R_OUT+3}], s{T0} offen sc1")
            a("s_nop 1")
    a(f"s_branch {n}_sigq")
    a.label(f"{n}_v")
    a(f"""
    v_lshlrev_b32 v{VT+1}, 3, v{VT+3}
    v_add_u32 v{VT+1}, v{VT+1}, v{VT}
    s_cmp_eq_u32 s{S_FW}, 0
    s_cbranch_scc0 {n}_v1
    """)
    def v_store(nt, ft0):
        srd(a, R_OUT, S_PWS, WS_KV, KV_BYTES)
        a(f"""
        s_lshl_b32 s{T1}, s{S_RB}, 3
        s_lshl_b32 s{T2}, s{S_TW}, 1
        s_add_u32 s{T1}, s{T1}, s{T2}
        s_mul_i32 s{T1}, s{T1}, {KV_TS}
        s_add_u32 s{S_SOX}, s{T1}, 1280
        s_and_b32 s{T0}, s{S_CB}, 3
        s_mul_i32 s{T0}, s{T0}, 160
        s_mov_b32 s{S_LA}, {KV_HS}
        """)
        for t in range(nt):
            a(f"""
            v_add_u32 v{VT}, s{T0}, v2
            v_add_u32 v{VT}, {32*(ft0+t)}, v{VT}
            v_mul_u32_u24 v{VT+1}, 52429, v{VT}
            v_lshrrev_b32 v{VT+1}, 20, v{VT+1}
            v_mul_u32_u24 v{VT+2}, 20, v{VT+1}
            v_sub_u32 v{VT+2}, v{VT}, v{VT+2}
            v_mul_lo_u32 v{VT+1}, v{VT+1}, s{S_LA}
            v_lshrrev_b32 v{VT+3}, 4, v{VT+2}
            v_xor_b32 v{VT+3}, v{VT+3}, v3
            v_lshl_add_u32 v{VT+3}, v{VT+2}, 1, v{VT+3}
            v_lshl_add_u32 v{VT}, v{VT+3}, 4, v{VT+1}
            """)
            for tt in range(2):
                for step in range(2):
                    b = acc(t, tt) + 8*step
                    for e in range(4):
                        a(f"v_cvt_pk_bf16_f32 v{VT+4+e}, v{b+2*e}, v{b+2*e+1}")
                    a(f"buffer_store_dwordx4 {vr(VT+4,4)}, v{VT}, s[{R_OUT}:{R_OUT+3}], s{S_SOX} offen offset:{tt*KV_TS+step*640} sc1")
                    a("s_nop 1")
    for t in range(3):
        a(f"v_add_u32 v{VWR+t}, {64*t}, v{VT+1}")
    zero_acc(a, 96)
    mainloop(a, 3, "N", 320, WSTEP_Q)
    v_store(3, 0)
    a(f"s_branch {n}_sigq")
    a.label(f"{n}_v1")
    for t in range(2):
        a(f"v_add_u32 v{VWR+t}, {64*(3+t)}, v{VT+1}")
    zero_acc(a, 64)
    mainloop(a, 2, "N", 320, WSTEP_Q)
    v_store(2, 3)
    a.label(f"{n}_sigq")
    a("s_waitcnt vmcnt(0)")
    a("s_barrier")
    signal(a, C_QKV)
    a(f"s_branch {L_next}")
    a.label(f"{n}_notqkv")
    a(f"""
    s_sub_u32 s{T1}, s{T1}, 3
    s_cmp_lt_u32 s{T0}, 2
    s_cselect_b32 s{T2}, 5, 4
    s_cmp_ge_u32 s{T1}, s{T2}
    s_cbranch_scc1 {n}_gate
    s_mul_i32 s{S_CB}, s{T0}, 5
    s_cmp_eq_u32 s{T0}, 3
    s_cselect_b32 s{T2}, 1, 0
    s_sub_u32 s{S_CB}, s{S_CB}, s{T2}
    s_add_u32 s{S_CB}, s{S_CB}, s{T1}
    """)
    srd(a, R_X, S_PX, 0, X_BYTES)
    a(f"""
    s_cmp_lt_u32 s{S_WAVE}, 6
    s_cselect_b32 s{R_WA}, s{S_PWG}, s{S_PWU}
    s_cselect_b32 s{R_WA+1}, s{S_PWG+1}, s{S_PWU+1}
    s_mov_b32 s{R_WA+2}, {WG_BYTES}
    s_mov_b32 s{R_WA+3}, 0x20000
    s_cselect_b32 s{T3}, 0, 6
    s_cselect_b32 s{T2}, 0, 6176
    s_sub_u32 s{T3}, s{S_WAVE}, s{T3}
    s_lshl_b32 s{S_LA}, s{T3}, 10
    s_add_u32 s{S_LA}, s{S_LA}, s{T2}
    s_add_u32 s{S_LA}, s{S_LA}, 16384
    """)
    srd(a, R_WB, S_PWU, 0, WG_BYTES)
    x_dma_setup(a)
    a(f"s_mul_i32 s{T2}, s{S_CB}, 192")
    w_voff(a, VWA, T3, 12, 5462, 3456, T2)
    a(f"""
    s_cmp_ge_u32 s{S_WAVE}, 4
    s_cselect_b32 s{S_HASB}, 1, 0
    s_sub_u32 s{T3}, s{S_WAVE}, 2
    s_max_i32 s{T3}, s{T3}, 0
    s_lshl_b32 s{S_LB}, s{T3}, 10
    s_add_u32 s{S_LB}, s{S_LB}, {16384+6176}
    """)
    w_voff(a, VWB, T3, 12, 5462, 3456, T2)
    WSTEP_F = 32*3456
    for st in range(NS):
        dma_stage(a, WSTEP_F)
    read_setup_common(a)
    a(f"""
    v_mul_u32_u24 v{VT}, 192, v{VT}
    v_mul_u32_u24 v{VT+4}, 6176, v{VT+4}
    v_and_b32 v{VT+1}, 1, v{VT+3}
    v_lshlrev_b32 v{VT+1}, 1, v{VT+1}
    v_lshrrev_b32 v{VT+3}, 1, v{VT+3}
    v_or_b32 v{VT+1}, v{VT+1}, v{VT+3}
    v_lshlrev_b32 v{VT+1}, 3, v{VT+1}
    v_add3_u32 v{VT}, v{VT}, v{VT+4}, v{VT+1}
    s_mul_i32 s{T0}, s{S_FW}, 96
    s_add_u32 s{T0}, s{T0}, 16384
    v_add_u32 v{VWR}, s{T0}, v{VT}
    v_add_u32 v{VWR+1}, 32, v{VWR}
    v_add_u32 v{VWR+2}, 64, v{VWR}
    """)
    zero_acc(a, 96)
    mainloop(a, 3, "T", 192, WSTEP_F)
    srd(a, R_OUT, S_PWS, WS_H, H_BYTES)
    a(f"""
    s_mul_i32 s{T0}, s{S_CB}, 6
    s_mul_i32 s{T1}, s{S_FW}, 3
    s_add_u32 s{T0}, s{T0}, s{T1}
    s_mul_i32 s{T0}, s{T0}, {H_GS}
    s_lshl_b32 s{T1}, s{S_RB}, 8
    s_lshl_b32 s{T2}, s{S_TW}, 6
    s_add_u32 s{T1}, s{T1}, s{T2}
    s_lshl_b32 s{T1}, s{T1}, 5
    s_add_u32 s{S_SOX}, s{T0}, s{T1}
    v_lshlrev_b32 v{VT}, 5, v2
    v_lshlrev_b32 v{VT+1}, 4, v3
    v_add_u32 v{VT}, v{VT}, v{VT+1}
    """)
    E = FR
    for t in range(3):
        for tt in range(2):
            b = acc(t, tt)
            for e in range(8): a(f"v_mul_f32 v{E+e}, 0xbfb8aa3b, v{b+e}")
            for e in range(8): a(f"v_exp_f32 v{E+e}, v{E+e}")
            for e in range(8): a(f"v_mul_f32 v{b+8+e}, v{b+8+e}, v{b+e}")
            for e in range(8): a(f"v_add_f32 v{E+e}, 1.0, v{E+e}")
            for e in range(8): a(f"v_rcp_f32 v{E+e}, v{E+e}")
            a(f"s_add_u32 s{T0}, s{S_SOX}, {t*H_GS + tt*1024}")
            for e in range(8): a(f"v_mul_f32 v{b+e}, v{b+8+e}, v{E+e}")
            for e in range(4): a(f"v_cvt_pk_bf16_f32 v{VT+4+e}, v{b+2*e}, v{b+2*e+1}")
            a(f"buffer_store_dwordx4 {vr(VT+4,4)}, v{VT}, s[{R_OUT}:{R_OUT+3}], s{T0} offen sc1")
    a("s_waitcnt vmcnt(0)")
    a("s_barrier")
    signal(a, C_H)
    a(f"s_branch {L_next}")
    a.label(f"{n}_gate")
    a(f"""
    s_sub_u32 s{T0}, s{T0}, 2
    s_lshl_b32 s{T0}, s{T0}, 3
    s_add_u32 s{S_RB}, s{S_RB}, s{T0}
    """)
    srd(a, R_X, S_PX, 0, X_BYTES)
    srd(a, R_WA, S_PGW, 0, 1280)
    srd(a, R_OUT, S_PWS, WS_G, G_BYTES)
    a(f"""
    v_and_b32 v2, 15, v{V_LANE}
    v_lshrrev_b32 v3, 4, v{V_LANE}
    v_mul_u32_u24 v4, 80, v2
    s_lshl_b32 s{T0}, s{S_RB}, 7
    s_lshl_b32 s{T1}, s{S_WAVE}, 4
    s_add_u32 s{T0}, s{T0}, s{T1}
    v_add_u32 v5, s{T0}, v3
    v_mul_u32_u24 v6, 1280, v5
    v_add_u32 v6, v6, v4
    """)
    for i in range(5):
        a(f"buffer_load_dwordx4 {vr(8+4*i,4)}, v4, s[{R_WA}:{R_WA+3}], 0 offen offset:{16*i}")
    for rd in range(4):
        a(f"s_mov_b32 s{T1}, {rd*4*1280}")
        for i in range(5):
            a(f"buffer_load_dwordx4 {vr(100+20*rd+4*i,4)}, v6, s[{R_X}:{R_X+3}], s{T1} offen offset:{16*i}")
    a("s_waitcnt vmcnt(20)")
    for i in range(20):
        a(f"v_lshlrev_b32 v{40+2*i}, 16, v{8+i}")
        a(f"v_and_b32 v{41+2*i}, 0xffff0000, v{8+i}")
    a("v_mov_b32 v37, 0")
    for rd in range(4):
        a(f"s_waitcnt vmcnt({5*(3-rd)})")
        a("v_mov_b32 v30, 0")
        a("v_mov_b32 v31, 0")
        for i in range(20):
            x = 100+20*rd+i
            a(f"v_lshlrev_b32 v32, 16, v{x}")
            a(f"v_and_b32 v33, 0xffff0000, v{x}")
            a(f"v_fmac_f32 v30, v32, v{40+2*i}")
            a(f"v_fmac_f32 v31, v33, v{41+2*i}")
        a("v_add_f32 v30, v30, v31")
        for sh in (8, 4, 2, 1):
            a("s_nop 1")
            a(f"v_add_f32_dpp v30, v30, v30 row_ror:{sh} row_mask:0xf bank_mask:0xf")
        a(f"v_cmp_eq_u32 vcc, {rd}, v2")
        a("s_nop 1")
        a("v_cndmask_b32 v37, v37, v30, vcc")
    a(f"""
    v_cvt_pk_bf16_f32 v31, v37, v37
    v_lshlrev_b32 v30, 16, v31
    v_mul_f32 v30, 0xbfb8aa3b, v30
    v_exp_f32 v30, v30
    s_nop 0
    v_add_f32 v30, 1.0, v30
    v_rcp_f32 v30, v30
    s_nop 0
    v_cvt_pk_bf16_f32 v31, v30, v30
    v_lshlrev_b32 v34, 16, v31
    v_sub_f32 v35, 1.0, v34
    v_cvt_pk_bf16_f32 v31, v35, v35
    v_lshlrev_b32 v35, 16, v31
    v_lshl_add_u32 v36, v2, 2, v3
    v_add_u32 v36, s{T0}, v36
    v_lshlrev_b32 v36, 3, v36
    v_cmp_gt_u32 vcc, 4, v2
    s_and_saveexec_b64 s[{T2}:{T3}], vcc
    buffer_store_dwordx2 v[34:35], v36, s[{R_OUT}:{R_OUT+3}], 0 offen sc1
    s_mov_b64 exec, s[{T2}:{T3}]
    s_waitcnt vmcnt(0)
    s_barrier
    """)
    signal(a, C_QKV)
    a(f"s_branch {L_next}")
```

```python
from mega_common import *

OPT = {}
TPC = 8
CH = TPC*KV_TS
NSLOT = 3

def gen_p2(a, L_next):
    name = "p2"
    S_HEAD, S_QB = 44, 45
    R_Q, R_KV, R_G, R_O = 28, 32, 36, 40
    S_CH, S_SLOTN, S_MASK = 46, 47, 48
    S_KVB, S_W1K = 50, 51
    S_T0, S_T1, S_T2 = 60, 61, 62
    S_SLOTD = 52
    Q1, Q2, KM, KX, V0, V1A, V1B, P, O, SA, SB = 4, 8, 12, 16, 20, 24, 28, 32, 40, 56, 72
    VK, VKX, VV, VKN, VKXN, VVN = 88, 89, 90, 91, 92, 93
    VD = 94
    T0, T1, T2, T3 = 95, 96, 97, 98
    a(f"""
    s_and_b32 s{S_T1}, s{S_ID}, 7
    s_lshr_b32 s{S_T0}, s{S_ID}, 3
    s_and_b32 s{S_HEAD}, s{S_T0}, 3
    s_lshl_b32 s{S_T1}, s{S_T1}, 2
    s_add_u32 s{S_HEAD}, s{S_HEAD}, s{S_T1}
    s_lshr_b32 s{S_QB}, s{S_T0}, 2
    """)
    srd(a, R_Q, S_PWS, WS_Q, Q_BYTES)
    srd(a, R_KV, S_PWS, WS_KV, KV_BYTES)
    srd(a, R_G, S_PWS, WS_G, G_BYTES)
    srd(a, R_O, S_PWS, WS_O, O_BYTES)
    a(f"""
    s_mul_i32 s{S_KVB}, s{S_HEAD}, {KV_HS}
    s_lshl_b32 s{S_W1K}, s{S_WAVE}, 10
    v_lshlrev_b32 v{VD}, 4, v{V_LANE}
    v_add_u32 v{VD}, s{S_W1K}, v{VD}
    """)
    wait_flag(a, 4*C_QKV, N_QKV, tmpv=T0)
    a("s_barrier")
    stamp(a, 4)
    def dma(chunk_sgpr, slot_sgpr):
        lab = a.uid(name + "_dma")
        a(f"s_mul_i32 s{S_T0}, s{chunk_sgpr}, {CH}")
        a(f"s_add_u32 s{S_T0}, s{S_T0}, s{S_KVB}")
        a(f"s_add_u32 s{S_T1}, s{slot_sgpr}, s{S_W1K}")
        a(f"s_mov_b32 m0, s{S_T1}")
        a(f"s_add_u32 s{S_T2}, s{S_T0}, 8192")
        a(f"buffer_load_dwordx4 v{VD}, s[{R_KV}:{R_KV+3}], s{S_T0} offen lds")
        a(f"s_add_u32 m0, s{S_T1}, 8192")
        a(f"s_add_u32 s{S_T0}, s{S_T0}, 16384")
        a(f"buffer_load_dwordx4 v{VD}, s[{R_KV}:{R_KV+3}], s{S_T2} offen lds")
        a(f"s_cmp_ge_u32 s{S_WAVE}, 4")
        a(f"s_cbranch_scc1 {lab}")
        a(f"s_add_u32 m0, s{S_T1}, 16384")
        a("s_nop 0")
        a(f"buffer_load_dwordx4 v{VD}, s[{R_KV}:{R_KV+3}], s{S_T0} offen lds")
        a.label(lab)
    a(f"s_mov_b32 s{S_CH}, 0")
    a(f"s_mov_b32 s{S_SLOTD}, 0")
    dma(S_CH, S_SLOTD)
    a(f"""
    s_lshl_b32 s{S_T0}, s{S_QB}, 3
    s_add_u32 s{S_T0}, s{S_T0}, s{S_WAVE}
    s_mul_i32 s{S_T1}, s{S_T0}, {Q_TS}
    s_mul_i32 s{S_T2}, s{S_HEAD}, {Q_HS}
    s_add_u32 s{S_T1}, s{S_T1}, s{S_T2}
    v_lshlrev_b32 v{T0}, 4, v{V_LANE}
    v_and_b32 v2, 31, v{V_LANE}
    v_lshrrev_b32 v3, 5, v{V_LANE}
    v_lshlrev_b32 v{T1}, 3, v2
    buffer_load_dwordx4 {vr(Q1,4)}, v{T0}, s[{R_Q}:{R_Q+3}], s{S_T1} offen
    v_mov_b32 v{Q2}, 0
    v_mov_b32 v{Q2+1}, 0
    v_mov_b32 v{Q2+2}, 0
    v_mov_b32 v{Q2+3}, 0
    s_mov_b32 exec_hi, 0
    buffer_load_dwordx2 {vr(Q2,2)}, v{T1}, s[{R_Q}:{R_Q+3}], s{S_T1} offen offset:1024
    s_mov_b32 exec_hi, -1
    s_lshl_b32 s{S_T0}, s{S_T0}, 5
    v_add_u32 v{T2}, s{S_T0}, v2
    v_lshlrev_b32 v{T2}, 3, v{T2}
    buffer_load_dword v{T3}, v{T2}, s[{R_G}:{R_G+3}], 0 offen
    """)
    a(f"""
    v_lshlrev_b32 v{VK}, 4, v{V_LANE}
    v_lshlrev_b32 v{VKX}, 3, v2
    v_add_u32 v{VKX}, 1024, v{VKX}
    v_lshrrev_b32 v{T0}, 4, v2
    v_xor_b32 v{T0}, v{T0}, v3
    v_lshl_add_u32 v{T0}, v2, 1, v{T0}
    v_lshlrev_b32 v{VV}, 4, v{T0}
    v_add_u32 v{VV}, 1280, v{VV}
    v_add_u32 v{VKN}, {CH}, v{VK}
    v_add_u32 v{VKXN}, {CH}, v{VKX}
    v_add_u32 v{VVN}, {CH}, v{VV}
    s_mov_b32 s{S_MASK}, 0xfffff
    s_mov_b32 s{S_MASK+1}, 0xfffff
    s_mov_b32 s{S_SLOTN}, {CH}
    """)
    for r in range(12):
        a(f"v_mov_b32 v{V0+r}, 0x3f803f80")
    for r in range(8):
        a(f"v_mov_b32 v{P+r}, 0")
    for r in range(16):
        a(f"v_mov_b32 v{O+r}, 0")
    a(f"v_mov_b32 v{KX+2}, 0")
    a(f"v_mov_b32 v{KX+3}, 0")
    if OPT.get("force_slow"):
        a("s_waitcnt vmcnt(0)")
        a(f"s_branch {name}_slow")
    a("s_waitcnt vmcnt(0)")
    a("s_barrier")
    a(f"s_mov_b32 s{S_CH}, 1")
    a(f"s_mov_b32 s{S_SLOTD}, {CH}")
    dma(S_CH, S_SLOTD)
    a(f"""
    ds_read_b128 {vr(KM,4)}, v{VK}
    ds_read_b64 {vr(KX,2)}, v{VKX}
    s_waitcnt lgkmcnt(0)
    v_mfma_f32_32x32x16_bf16 {vr(SA,16)}, {vr(KM,4)}, {vr(Q1,4)}, 0
    ds_read_b128 {vr(KM,4)}, v{VK} offset:{KV_TS}
    v_mfma_f32_32x32x16_bf16 {vr(SA,16)}, {vr(KX,4)}, {vr(Q2,4)}, {vr(SA,16)}
    ds_read_b64 {vr(KX,2)}, v{VKX} offset:{KV_TS}
    s_mov_b64 exec, s[{S_MASK}:{S_MASK+1}]
    ds_read_b128 {vr(V0,4)}, v{VV}
    ds_read_b128 {vr(V1A,4)}, v{VV} offset:640
    s_mov_b64 exec, -1
    s_mov_b32 s{S_CH}, 0
    s_nop 7
    """)
    def E(S_, r): a(f"v_exp_f32 v{S_+r}, v{S_+r}")
    def C(S_, j): a(f"v_cvt_pk_bf16_f32 v{P+j}, v{S_+2*j}, v{S_+2*j+1}")
    def tile(t):
        Sc, Sn = (SA, SB) if t % 2 == 0 else (SB, SA)
        V1prev = V1B if t % 2 == 0 else V1A
        V1next = V1prev
        def kaddr(tt, cur, nxt):
            return (cur, tt*KV_TS) if tt < TPC else (nxt, (tt-TPC)*KV_TS)
        if t == TPC-2:
            lab = a.uid(name + "_nodma")
            a("s_waitcnt vmcnt(0)")
            a("s_barrier")
            a(f"s_add_u32 s{S_CH}, s{S_CH}, 2")
            a(f"s_cmp_ge_u32 s{S_CH}, 8")
            a(f"s_cbranch_scc1 {lab}")
            a(f"s_add_u32 s{S_SLOTD}, s{S_SLOTN}, {CH}")
            a(f"s_cmp_ge_u32 s{S_SLOTD}, {NSLOT*CH}")
            a(f"s_cselect_b32 s{S_SLOTD}, 0, s{S_SLOTD}")
            dma(S_CH, S_SLOTD)
            a.label(lab)
            a(f"s_sub_u32 s{S_CH}, s{S_CH}, 2")
        a("s_waitcnt lgkmcnt(3)")
        a(f"v_mfma_f32_32x32x16_bf16 {vr(Sn,16)}, {vr(KM,4)}, {vr(Q1,4)}, 0")
        r, o = kaddr(t+2, VK, VKN)
        a(f"ds_read_b128 {vr(KM,4)}, v{r} offset:{o}")
        for e in range(0, 4): E(Sc, e)
        C(Sc, 0); C(Sc, 1)
        a(f"v_mfma_f32_32x32x16_bf16 {vr(O,16)}, {vr(V1prev,4)}, {vr(P+4,4)}, {vr(O,16)}")
        for e in range(4, 8): E(Sc, e)
        C(Sc, 2); C(Sc, 3)
        a("s_waitcnt lgkmcnt(3)")
        a(f"v_mfma_f32_32x32x16_bf16 {vr(Sn,16)}, {vr(KX,4)}, {vr(Q2,4)}, {vr(Sn,16)}")
        r, o = kaddr(t+2, VKX, VKXN)
        a(f"ds_read_b64 {vr(KX,2)}, v{r} offset:{o}")
        for e in range(8, 12): E(Sc, e)
        C(Sc, 4); C(Sc, 5)
        a("s_waitcnt lgkmcnt(3)")
        a(f"v_mfma_f32_32x32x16_bf16 {vr(O,16)}, {vr(V0,4)}, {vr(P,4)}, {vr(O,16)}")
        r, o = kaddr(t+1, VV, VVN)
        a(f"s_mov_b64 exec, s[{S_MASK}:{S_MASK+1}]")
        a(f"ds_read_b128 {vr(V0,4)}, v{r} offset:{o}")
        a(f"ds_read_b128 {vr(V1next,4)}, v{r} offset:{o+640}")
        a("s_mov_b64 exec, -1")
        for e in range(12, 16): E(Sc, e)
        C(Sc, 6); C(Sc, 7)
    a.raw(".p2align 6")
    a.label(f"{name}_loop")
    for t in range(TPC):
        tile(t)
    a(f"""
    v_mov_b32 v{VK}, v{VKN}
    v_mov_b32 v{VKX}, v{VKXN}
    v_mov_b32 v{VV}, v{VVN}
    s_add_u32 s{S_T0}, s{S_SLOTN}, {CH}
    s_cmp_ge_u32 s{S_T0}, {NSLOT*CH}
    s_cselect_b32 s{S_T0}, 0, s{S_T0}
    s_sub_u32 s{S_T1}, s{S_T0}, s{S_SLOTN}
    s_mov_b32 s{S_SLOTN}, s{S_T0}
    v_add_u32 v{VKN}, s{S_T1}, v{VKN}
    v_add_u32 v{VKXN}, s{S_T1}, v{VKXN}
    v_add_u32 v{VVN}, s{S_T1}, v{VVN}
    s_add_u32 s{S_CH}, s{S_CH}, 1
    s_cmp_lt_u32 s{S_CH}, 8
    s_cbranch_scc1 {name}_loop
    """)
    a("s_waitcnt lgkmcnt(0)")
    a(f"v_mfma_f32_32x32x16_bf16 {vr(O,16)}, {vr(V1B,4)}, {vr(P+4,4)}, {vr(O,16)}")
    a("s_nop 15")
    stamp(a, 5)
    a(f"v_mov_b32 v{T0}, 0")
    for r in range(12):
        a(f"v_fmac_f32 v{T0}, 0, v{O+r}")
    a(f"""
    s_mov_b32 s{S_T0}, 0x2b800000
    s_mov_b32 s{S_T1}, 0x5f800000
    v_cmp_gt_f32 vcc, s{S_T0}, v{O+12}
    v_add_f32 v{T0}, v{T0}, v{O+12}
    s_mov_b64 s[54:55], vcc
    v_cmp_nge_f32 vcc, s{S_T1}, v{T0}
    s_or_b64 s[54:55], vcc, s[54:55]
    s_cbranch_scc1 {name}_slow
    """)
    a.label(f"{name}_fin")
    a(f"""
    v_rcp_f32 v{T0}, v{O+12}
    s_lshl_b32 s{S_T0}, s{S_QB}, 3
    s_add_u32 s{S_T0}, s{S_T0}, s{S_WAVE}
    s_mul_i32 s{S_T0}, s{S_T0}, {O_TS}
    v_mul_f32 v{T0}, v{T0}, v{T3}
    s_mul_i32 s{S_T1}, s{S_HEAD}, {O_HS}
    s_add_u32 s{S_T0}, s{S_T0}, s{S_T1}
    v_lshlrev_b32 v{T1}, 4, v{V_LANE}
    """)
    for r in range(12):
        a(f"v_mul_f32 v{O+r}, v{T0}, v{O+r}")
    for e in range(6):
        a(f"v_cvt_pk_bf16_f32 v{P+e}, v{O+2*e}, v{O+2*e+1}")
    a(f"v_mov_b32 v{P+6}, 0")
    a(f"v_mov_b32 v{P+7}, 0")
    a(f"buffer_store_dwordx4 {vr(P,4)}, v{T1}, s[{R_O}:{R_O+3}], s{S_T0} offen sc1")
    a("s_mov_b32 exec_hi, 0")
    a(f"buffer_store_dwordx4 {vr(P+4,4)}, v{T1}, s[{R_O}:{R_O+3}], s{S_T0} offen offset:1024 sc1")
    a("s_mov_b32 exec_hi, -1")
    a("s_waitcnt vmcnt(0)")
    a("s_barrier")
    lab = a.uid("sigo")
    a(f"""
    s_cmp_lg_u32 s{S_WAVE}, 0
    s_cbranch_scc1 {lab}
    s_lshl_b32 s{S_T0}, s{S_QB}, 2
    s_add_u32 s{S_T0}, s{S_T0}, {4*C_O}
    s_mov_b64 exec, 1
    v_mov_b32 v{T0}, s{S_T0}
    v_mov_b32 v{T1}, 1
    global_atomic_add v{T0}, v{T1}, s[{S_PDBG}:{S_PDBG+1}]
    s_mov_b64 exec, -1
    """)
    a.label(lab)
    a(f"s_branch {L_next}")
    a.label(f"{name}_slow")
    M, MN, AL = VK, VKX, VKN
    a(f"""
    v_lshlrev_b32 v{VD}, 4, v{V_LANE}
    v_lshlrev_b32 v{VKXN}, 3, v2
    v_lshrrev_b32 v{T0}, 4, v2
    v_xor_b32 v{T0}, v{T0}, v3
    v_lshl_add_u32 v{T0}, v2, 1, v{T0}
    v_lshlrev_b32 v{VV}, 4, v{T0}
    v_mov_b32 v{M}, 0xff800000
    s_mov_b32 s{S_CH}, s{S_KVB}
    s_add_u32 s{S_SLOTN}, s{S_KVB}, {KV_HS}
    """)
    for r in range(16):
        a(f"v_mov_b32 v{O+r}, 0")
    for r in range(8):
        a(f"v_mov_b32 v{V0+r}, 0x3f803f80")
    a.label(f"{name}_sloop")
    a(f"""
    buffer_load_dwordx4 {vr(KM,4)}, v{VD}, s[{R_KV}:{R_KV+3}], s{S_CH} offen
    buffer_load_dwordx2 {vr(KX,2)}, v{VKXN}, s[{R_KV}:{R_KV+3}], s{S_CH} offen offset:1024
    s_mov_b64 exec, s[{S_MASK}:{S_MASK+1}]
    buffer_load_dwordx4 {vr(V0,4)}, v{VV}, s[{R_KV}:{R_KV+3}], s{S_CH} offen offset:1280
    buffer_load_dwordx4 {vr(V1A,4)}, v{VV}, s[{R_KV}:{R_KV+3}], s{S_CH} offen offset:1920
    s_mov_b64 exec, -1
    s_waitcnt vmcnt(2)
    v_mfma_f32_32x32x16_bf16 {vr(SA,16)}, {vr(KM,4)}, {vr(Q1,4)}, 0
    v_mfma_f32_32x32x16_bf16 {vr(SA,16)}, {vr(KX,4)}, {vr(Q2,4)}, {vr(SA,16)}
    s_nop 15
    v_max3_f32 v{MN}, v{SA}, v{SA+1}, v{M}
    """)
    for r in range(2, 16, 2):
        a(f"v_max3_f32 v{MN}, v{SA+r}, v{SA+r+1}, v{MN}")
    a(f"""
    v_mov_b32 v{T0}, v{MN}
    s_nop 1
    v_permlane32_swap_b32 v{MN}, v{T0}
    s_nop 1
    v_max_f32 v{MN}, v{MN}, v{T0}
    v_sub_f32 v{AL}, v{M}, v{MN}
    v_exp_f32 v{AL}, v{AL}
    v_mov_b32 v{M}, v{MN}
    """)
    for r in range(16):
        a(f"v_sub_f32 v{SA+r}, v{SA+r}, v{MN}")
    for r in range(16):
        a(f"v_mul_f32 v{O+r}, v{AL}, v{O+r}")
    for r in range(16):
        E(SA, r)
    a("s_nop 0")
    for j in range(8):
        C(SA, j)
    a(f"""
    s_waitcnt vmcnt(0)
    s_nop 1
    v_mfma_f32_32x32x16_bf16 {vr(O,16)}, {vr(V0,4)}, {vr(P,4)}, {vr(O,16)}
    v_mfma_f32_32x32x16_bf16 {vr(O,16)}, {vr(V1A,4)}, {vr(P+4,4)}, {vr(O,16)}
    s_add_u32 s{S_CH}, s{S_CH}, {KV_TS}
    s_nop 15
    s_cmp_lt_u32 s{S_CH}, s{S_SLOTN}
    s_cbranch_scc1 {name}_sloop
    s_branch {name}_fin
    """)
```

```python
from mega_common import *

OPT = {}
NS = 8
SLOT = 18432
NR_H, NR_M, NR_E = 27, 8, 4
NR = NR_H + NR_M + NR_E

def gen_p3(a, L_next):
    n = "p3"
    S_RB, S_CB = 44, 45
    R_H, R_O, R_WD, R_WO, R_OUT, R_G = 28, 32, 36, 40, 64, 68
    T0, T1, T2, T3 = 60, 61, 62, 63
    a(f"""
    s_and_b32 s{T0}, s{S_ID}, 7
    s_lshr_b32 s{T1}, s{S_ID}, 3
    s_lshl_b32 s{S_RB}, s{T0}, 2
    s_lshr_b32 s{T2}, s{T1}, 3
    s_add_u32 s{S_RB}, s{S_RB}, s{T2}
    s_and_b32 s{S_CB}, s{T1}, 7
    s_cmp_ge_u32 s{S_WAVE}, 4
    s_cbranch_scc1 {n}_loader
    """)
    S_TH, S_KP, S_RS, S_DELTA, S_CNT = 46, 47, 48, 49, 50
    VW, VX, VOM = 4, 5, 6
    WF = [8, 36]
    XF = [28, 56]
    ACC = 64
    VT = 104
    srd(a, R_G, S_PWS, WS_G, G_BYTES)
    srd(a, R_OUT, S_POUT, 0, OUT_BYTES)
    a(f"""
    s_and_b32 s{S_TH}, s{S_WAVE}, 1
    s_lshr_b32 s{S_KP}, s{S_WAVE}, 1
    v_and_b32 v2, 15, v{V_LANE}
    v_lshrrev_b32 v3, 4, v{V_LANE}
    s_lshl_b32 s{T0}, s{S_RB}, 6
    s_lshl_b32 s{T1}, s{S_TH}, 5
    s_add_u32 s{T0}, s{T0}, s{T1}
    v_add_u32 v{VT}, s{T0}, v2
    v_lshlrev_b32 v{VT+1}, 3, v{VT}
    buffer_load_dword v{VOM}, v{VT+1}, s[{R_G}:{R_G+3}], 0 offen offset:4
    buffer_load_dword v{VOM+1}, v{VT+1}, s[{R_G}:{R_G+3}], 0 offen offset:132
    """)
    a(f"""
    v_add_u32 v{VT+1}, s{T1}, v2
    v_lshrrev_b32 v{VT+2}, 2, v2
    v_sub_u32 v{VT+2}, 0, v{VT+2}
    v_and_b32 v{VT+2}, 3, v{VT+2}
    v_xor_b32 v{VT+2}, v{VT+2}, v3
    v_lshlrev_b32 v{VT+2}, 4, v{VT+2}
    v_lshlrev_b32 v{VT+1}, 6, v{VT+1}
    s_lshl_b32 s{T2}, s{S_KP}, 12
    v_add3_u32 v{VX}, v{VT+1}, v{VT+2}, s{T2}
    """)
    a(f"""
    v_lshrrev_b32 v{VT+1}, 1, v3
    v_lshlrev_b32 v{VT+1}, 4, v{VT+1}
    v_and_b32 v{VT+2}, 1, v3
    v_lshlrev_b32 v{VT+2}, 2, v{VT+2}
    v_lshrrev_b32 v{VT+3}, 2, v2
    v_add3_u32 v{VT+1}, v{VT+1}, v{VT+2}, v{VT+3}
    v_mul_u32_u24 v{VT+1}, 160, v{VT+1}
    v_and_b32 v{VT+2}, 3, v2
    v_lshlrev_b32 v{VT+2}, 3, v{VT+2}
    s_mul_i32 s{T2}, s{S_KP}, 5120
    s_add_u32 s{T2}, s{T2}, 8192
    v_add3_u32 v{VW}, v{VT+1}, v{VT+2}, s{T2}
    s_mov_b32 s{S_RS}, 0
    s_mov_b32 s{T3}, {SLOT}
    """)
    for r in range(40):
        a(f"v_mov_b32 v{ACC+r}, 0")
    def reads(s_):
        for ft in range(5):
            for ab in range(2):
                a(f"ds_read_b64_tr_b16 {vr(WF[s_]+ft*4+2*ab,2)}, v{VW} offset:{ab*1280+ft*32}")
        for tt in range(2):
            a(f"ds_read_b128 {vr(XF[s_]+tt*4,4)}, v{VX} offset:{tt*1024}")
    def advance():
        a(f"s_add_u32 s{S_RS}, s{S_RS}, {SLOT}")
        a(f"s_cmp_ge_u32 s{S_RS}, {NS*SLOT}")
        a(f"s_cselect_b32 s{S_DELTA}, {(-(NS-1)*SLOT) & 0xffffffff}, s{T3}")
        a(f"s_cselect_b32 s{S_RS}, 0, s{S_RS}")
        a(f"v_add_u32 v{VW}, s{S_DELTA}, v{VW}")
        a(f"v_add_u32 v{VX}, s{S_DELTA}, v{VX}")
    def mf(s_):
        for ft in range(5):
            for tt in range(2):
                b = ACC + (ft*2+tt)*4
                a(f"v_mfma_f32_16x16x32_bf16 {vr(b,4)}, {vr(WF[s_]+ft*4,4)}, {vr(XF[s_]+tt*4,4)}, {vr(b,4)}")
    def scale():
        a("s_nop 7")
        for ft in range(5):
            for tt in range(2):
                b = ACC + (ft*2+tt)*4
                for r in range(4):
                    a(f"v_mul_f32 v{b+r}, v{VOM+tt}, v{b+r}")
        a("s_nop 1")
    def rnd(s_, do_mf, pre=None):
        a("s_barrier")
        reads(s_)
        advance()
        if do_mf:
            mf(s_ ^ 1)
            if pre: pre()
        a("s_waitcnt lgkmcnt(0)")
    a("s_waitcnt vmcnt(0)")
    rnd(0, False)
    a(f"s_mov_b32 s{S_CNT}, 13")
    lab = a.uid("p3c")
    a.label(lab)
    rnd(1, True)
    rnd(0, True)
    a(f"s_sub_u32 s{S_CNT}, s{S_CNT}, 1")
    a(f"s_cmp_lg_u32 s{S_CNT}, 0")
    a(f"s_cbranch_scc1 {lab}")
    rnd(1, True, pre=scale)
    a(f"s_mov_b32 s{S_CNT}, 5")
    lab = a.uid("p3d")
    a.label(lab)
    rnd(0, True)
    rnd(1, True)
    a(f"s_sub_u32 s{S_CNT}, s{S_CNT}, 1")
    a(f"s_cmp_lg_u32 s{S_CNT}, 0")
    a(f"s_cbranch_scc1 {lab}")
    rnd(0, True)
    mf(0)
    stamp(a, 7)
    a("s_barrier")
    a(f"""
    s_nop 7
    s_mul_i32 s{T0}, s{S_WAVE}, {6*1024}
    v_lshlrev_b32 v{VT}, 4, v{V_LANE}
    v_add_u32 v{VT+1}, s{T0}, v{VT}
    s_xor_b32 s{T1}, s{S_WAVE}, 2
    s_mul_i32 s{T1}, s{T1}, {6*1024}
    v_add_u32 v{VT+2}, s{T1}, v{VT}
    s_lshl_b32 s{T0}, s{S_RB}, 6
    s_lshl_b32 s{T1}, s{S_TH}, 5
    s_add_u32 s{T0}, s{T0}, s{T1}
    v_add_u32 v{VT+3}, s{T0}, v2
    v_mul_u32_u24 v{VT+3}, 1280, v{VT+3}
    s_mul_i32 s{T0}, s{S_CB}, 160
    v_lshlrev_b32 v{VT+4}, 3, v3
    v_add3_u32 v{VT+3}, v{VT+3}, v{VT+4}, s{T0}
    s_mov_b32 s{T2}, {16*1280}
    s_cmp_eq_u32 s{S_KP}, 0
    s_cbranch_scc0 {n}_kp1
    """)
    def finish(own, give):
        k = 0
        for ft in give:
            for tt in range(2):
                a(f"ds_write_b128 v{VT+1}, {vr(ACC+(ft*2+tt)*4,4)} offset:{k*1024}")
                k += 1
        a("s_waitcnt lgkmcnt(0)")
        a("s_barrier")
        k = 0
        for ft in own:
            for tt in range(2):
                a(f"ds_read_b128 {vr(8+4*k,4)}, v{VT+2} offset:{k*1024}")
                k += 1
        a("s_waitcnt lgkmcnt(0)")
        k = 0
        for ft in own:
            for tt in range(2):
                b = ACC+(ft*2+tt)*4
                for r in range(4):
                    a(f"v_add_f32 v{b+r}, v{b+r}, v{8+4*k+r}")
                a(f"v_cvt_pk_bf16_f32 v{VT+6}, v{b}, v{b+1}")
                a(f"v_cvt_pk_bf16_f32 v{VT+7}, v{b+2}, v{b+3}")
                so = "0" if tt == 0 else f"s{T2}"
                a(f"buffer_store_dwordx2 {vr(VT+6,2)}, v{VT+3}, s[{R_OUT}:{R_OUT+3}], {so} offen offset:{ft*32}")
                a("s_nop 0")
                k += 1
    finish([0,1,2], [3,4])
    a(f"s_branch {L_next}")
    a.label(f"{n}_kp1")
    finish([3,4], [0,1,2])
    a(f"s_branch {L_next}")
    a.label(f"{n}_loader")
    S_KP, S_SUB, S_DS, S_SX, S_SW, S_LX, S_LW, S_CNT = 46, 47, 48, 49, 50, 51, 52, 53
    XH, XM, XE = 4, 6, 8
    WH, WM, WE = 10, 13, 16
    VT = 20
    srd(a, R_H, S_PWS, WS_H-1024, H_BYTES+1024)
    srd(a, R_O, S_PWS, WS_O-1024, O_BYTES+1024)
    srd(a, R_WD, S_PWD, 0, WD_BYTES)
    srd(a, R_WO, S_PWO, 0, WO_BYTES)
    a(f"""
    s_sub_u32 s{T0}, s{S_WAVE}, 4
    s_lshr_b32 s{S_KP}, s{T0}, 1
    s_and_b32 s{S_SUB}, s{T0}, 1
    s_lshl_b32 s{S_LX}, s{S_KP}, 12
    s_lshl_b32 s{T1}, s{S_SUB}, 11
    s_add_u32 s{S_LX}, s{S_LX}, s{T1}
    s_mul_i32 s{S_LW}, s{S_KP}, 5120
    s_mul_i32 s{T1}, s{S_SUB}, 3072
    s_add_u32 s{S_LW}, s{S_LW}, s{T1}
    s_add_u32 s{S_LW}, s{S_LW}, 8192
    """)
    for i in range(2):
        a(f"""
        v_lshrrev_b32 v{VT}, 2, v{V_LANE}
        s_lshl_b32 s{T1}, s{S_SUB}, 5
        s_add_u32 s{T1}, s{T1}, {16*i}
        v_add_u32 v{VT}, s{T1}, v{VT}
        v_lshrrev_b32 v{VT+1}, 2, v{VT}
        v_sub_u32 v{VT+1}, 0, v{VT+1}
        v_and_b32 v{VT+1}, 3, v{VT+1}
        v_and_b32 v{VT+2}, 3, v{V_LANE}
        v_xor_b32 v{VT+1}, v{VT+1}, v{VT+2}
        s_lshl_b32 s{T1}, s{S_RB}, 6
        v_add_u32 v{VT}, s{T1}, v{VT}
        v_lshrrev_b32 v{VT+2}, 1, v{VT+1}
        v_and_b32 v{VT+3}, 1, v{VT+1}
        v_lshlrev_b32 v{VT+4}, 16, v{VT+2}
        v_lshl_add_u32 v{VT+4}, v{VT}, 5, v{VT+4}
        v_lshl_add_u32 v{VT+4}, v{VT+3}, 4, v{VT+4}
        v_add_u32 v{XH+i}, {1024-1024*i}, v{VT+4}
        v_lshrrev_b32 v{VT+4}, 5, v{VT}
        v_mul_u32_u24 v{VT+4}, {O_TS}, v{VT+4}
        v_and_b32 v{VT+5}, 31, v{VT}
        v_lshl_add_u32 v{VT+4}, v{VT+5}, 4, v{VT+4}
        s_mov_b32 s{T1}, {O_HS}
        v_mul_lo_u32 v{VT+5}, v{VT+2}, s{T1}
        v_lshlrev_b32 v{VT+6}, 9, v{VT+3}
        v_add3_u32 v{VT+5}, v{VT+5}, v{VT+6}, v{VT+4}
        v_add_u32 v{XM+i}, {1024-1024*i}, v{VT+5}
        v_mul_lo_u32 v{VT+5}, v{VT+1}, s{T1}
        v_add_u32 v{VT+5}, v{VT+5}, v{VT+4}
        v_add_u32 v{XE+i}, {2048-1024*i}, v{VT+5}
        """)
    a(f"s_mul_i32 s{T2}, s{S_CB}, 160")
    for i in range(3):
        a(f"""
        s_mul_i32 s{T1}, s{S_SUB}, 192
        s_add_u32 s{T1}, s{T1}, {64*i}
        v_add_u32 v{VT}, s{T1}, v{V_LANE}
        v_mul_u32_u24 v{VT+1}, 6554, v{VT}
        v_lshrrev_b32 v{VT+1}, 16, v{VT+1}
        v_mul_u32_u24 v{VT+2}, 10, v{VT+1}
        v_sub_u32 v{VT+2}, v{VT}, v{VT+2}
        v_lshlrev_b32 v{VT+2}, 4, v{VT+2}
        v_add_u32 v{VT+2}, s{T2}, v{VT+2}
        v_subrev_u32 v{VT+2}, {1024*i}, v{VT+2}
        v_lshrrev_b32 v{VT+3}, 4, v{VT+1}
        v_bfe_u32 v{VT+4}, v{VT+1}, 2, 1
        v_bfe_u32 v{VT+5}, v{VT+1}, 3, 1
        v_and_b32 v{VT+6}, 3, v{VT+1}
        v_lshlrev_b32 v{VT+7}, 4, v{VT+3}
        v_lshl_add_u32 v{VT+7}, v{VT+4}, 3, v{VT+7}
        v_lshl_add_u32 v{VT+7}, v{VT+5}, 2, v{VT+7}
        v_add_u32 v{VT+7}, v{VT+7}, v{VT+6}
        v_mul_u32_u24 v{VT+7}, 1280, v{VT+7}
        v_add_u32 v{WH+i}, v{VT+7}, v{VT+2}
        v_mul_u32_u24 v{VT+7}, 20, v{VT+3}
        v_lshl_add_u32 v{VT+7}, v{VT+4}, 2, v{VT+7}
        v_lshl_add_u32 v{VT+7}, v{VT+5}, 3, v{VT+7}
        v_add_u32 v{VT+7}, v{VT+7}, v{VT+6}
        v_mul_u32_u24 v{VT+7}, 1280, v{VT+7}
        v_add_u32 v{WM+i}, v{VT+7}, v{VT+2}
        v_lshl_add_u32 v{VT+7}, v{VT+3}, 1, v{VT+4}
        v_mul_u32_u24 v{VT+7}, 20, v{VT+7}
        v_add3_u32 v{VT+7}, v{VT+7}, v{VT+6}, 16
        v_mul_u32_u24 v{VT+7}, 1280, v{VT+7}
        v_add_u32 v{VT+7}, v{VT+7}, v{VT+2}
        v_cmp_eq_u32 vcc, 0, v{VT+5}
        v_mov_b32 v{VT+6}, 0x40000000
        s_nop 0
        v_cndmask_b32 v{WE+i}, v{VT+6}, v{VT+7}, vcc
        """)
    def issue(kind):
        X, W, RX, RW = {"H": (XH, WH, R_H, R_WD), "M": (XM, WM, R_O, R_WO), "E": (XE, WE, R_O, R_WO)}[kind]
        dx, dw = {"H": (4*H_GS, 64*1280), "M": (4*O_HS, 80*1280), "E": (8*O_HS, 160*1280)}[kind]
        lab = a.uid("p3nb")
        a(f"s_add_u32 m0, s{S_DS}, s{S_LX}")
        a("s_nop 0")
        a(f"buffer_load_dwordx4 v{X}, s[{RX}:{RX+3}], s{S_SX} offen lds")
        a(f"buffer_load_dwordx4 v{X+1}, s[{RX}:{RX+3}], s{S_SX} offen offset:1024 lds")
        a(f"s_add_u32 m0, s{S_DS}, s{S_LW}")
        a(f"s_add_u32 s{S_SX}, s{S_SX}, {dx}")
        a(f"buffer_load_dwordx4 v{W}, s[{RW}:{RW+3}], s{S_SW} offen lds")
        a(f"buffer_load_dwordx4 v{W+1}, s[{RW}:{RW+3}], s{S_SW} offen offset:1024 lds")
        a(f"s_cmp_lg_u32 s{S_SUB}, 0")
        a(f"s_cbranch_scc1 {lab}")
        a(f"buffer_load_dwordx4 v{W+2}, s[{RW}:{RW+3}], s{S_SW} offen offset:2048 lds")
        a.label(lab)
        a(f"s_add_u32 s{S_SW}, s{S_SW}, {dw}")
        a(f"s_add_u32 s{S_DS}, s{S_DS}, {SLOT}")
        a(f"s_cmp_ge_u32 s{S_DS}, {NS*SLOT}")
        a(f"s_cselect_b32 s{S_DS}, 0, s{S_DS}")
    def start(kind):
        x0, w0 = {"H": (2*H_GS, 32*1280), "M": (2*O_HS, 40*1280), "E": (4*O_HS, 80*1280)}[kind]
        a(f"s_mul_i32 s{S_SX}, s{S_KP}, {x0}")
        a(f"s_mul_i32 s{S_SW}, s{S_KP}, {w0}")
    def waitv(nr):
        if nr == 0:
            a("s_waitcnt vmcnt(0)"); return
        lab = a.uid("p3w")
        a(f"s_cmp_lg_u32 s{S_SUB}, 0")
        a(f"s_cbranch_scc1 {lab}_4")
        a(f"s_waitcnt vmcnt({5*nr})")
        a(f"s_branch {lab}_e")
        a.label(lab + "_4")
        a(f"s_waitcnt vmcnt({4*nr})")
        a.label(lab + "_e")
    def poll(offs, target):
        lab = a.uid("p3p")
        a(f"s_mov_b64 s[24:25], exec")
        a("s_mov_b64 exec, 1")
        a(f"v_mov_b32 v{VT}, {offs}")
        a(f"s_mov_b32 s26, 0x40000")
        a.label(lab)
        a(f"global_load_dword v{VT+1}, v{VT}, s[{S_PDBG}:{S_PDBG+1}] sc1")
        a("s_waitcnt vmcnt(0)")
        a(f"v_readfirstlane_b32 s27, v{VT+1}")
        a("s_sub_u32 s26, s26, 1")
        a("s_cmp_eq_u32 s26, 0")
        a(f"s_cbranch_scc1 {lab}_o")
        a(f"s_cmp_ge_u32 s27, {target}")
        a(f"s_cbranch_scc1 {lab}_o")
        a("s_sleep 2")
        a(f"s_branch {lab}")
        a.label(lab + "_o")
        a("s_mov_b64 exec, s[24:25]")
    poll(4*C_H, N_H)
    a(f"s_mov_b32 s{S_DS}, 0")
    start("H")
    kinds = ["H"]*NR_H + ["M"]*NR_M + ["E"]*NR_E
    for r in range(NS): issue("H")
    waitv(NS-1); a("s_barrier")
    a(f"s_mov_b32 s{S_CNT}, {NR_H-NS}")
    lab = a.uid("p3l")
    a.label(lab)
    waitv(NS-2); a("s_barrier")
    issue("H")
    a(f"s_sub_u32 s{S_CNT}, s{S_CNT}, 1")
    a(f"s_cmp_lg_u32 s{S_CNT}, 0")
    a(f"s_cbranch_scc1 {lab}")
    waitv(NS-2); a("s_barrier")
    a(f"s_lshr_b32 s{T0}, s{S_RB}, 2")
    a(f"s_lshl_b32 s{T0}, s{T0}, 2")
    a(f"s_add_u32 s{T0}, s{T0}, {4*C_O}")
    poll(f"s{T0}", N_O)
    start("M")
    r = 20
    issued = NR_H
    def step():
        nonlocal issued
        if issued < NR:
            if issued == NR_H + NR_M: start("E")
            issue(kinds[issued]); issued += 1
    step()
    for r in range(21, NR):
        waitv(issued - 1 - r)
        a("s_barrier")
        step()
    a("s_barrier")
    a("s_barrier")
    a(f"s_branch {L_next}")
```

```python
from devrun2 import *
from common import _check, _hip
import asmlib
prof = len(sys.argv) > 1 and sys.argv[1] == "prof"
asmlib.PROF["on"] = prof
from build2 import *
import mega, p1, p2, p3
opts = eval(sys.argv[2]) if len(sys.argv) > 2 else {}
p1.OPT.update(opts.get("p1", {})); p2.OPT.update(opts.get("p2", {})); p3.OPT.update(opts.get("p3", {}))
txt = assemble_single(lambda a, n: mega.gen_mega(a, n), 163840)
open("mega_prof.s" if prof else "mega.s", "w").write(txt)
if not os.path.exists('/dev/kfd'):
    co = build(txt, KNAME, 11, "dev_tmp"); print(cl.address_register_problem(co, KNAME), len(txt)); sys.exit(0)
scales = [None] if opts.get("noscale", True) else [None, {"A_wqkv": 4.0}]
for scale in scales:
    d = Dev2(txt, scale=scale)
    d.poison()
    d.run(extra=3)
    print("dbg", d.dbg_np()[[0,16,32,33,34,35,36,37,38,39]])
    r = ref_intermediates(d.inp)
    g = d.ws_np(WS_G, G_BYTES, np.float32).reshape(S, 2)
    report("h", decode_h(d.ws_np(WS_H, H_BYTES, np.uint16)), r["h"])
    report("o'", decode_o(d.ws_np(WS_O, O_BYTES, np.uint16)), r["o"]*g[:, :1])
    report("out", d.out_np(), r["out"])
    if scale is None:
        refout = d.ref.reference(*[d.inp[n] for n in d.names]).float().numpy().reshape(S, D)
        report("out vs bf16 torch ref", d.out_np(), refout)
if prof:
    names = ["start", "p1 first-data", "p1 loop-end", "p1 end", "p2 flag ok", "p2 loop-end", "p2 end", "p3 loop-end", "end"]
    for mode in ("cold", "cold", "warm", "warm"):
        _check(_hip.hipMemset(ctypes.c_void_p(d.ws.ptr + asmlib.PROF_WS), 0xFF, 0x80000))
        if mode == "warm":
            for _ in range(3): d.run()
        d.run(cold=(mode == "cold"))
        raw = d.ws_np(asmlib.PROF_WS, 0x80000, np.uint32).reshape(-1, 16, 16)[:256].astype(np.int64)
        v = raw[:, :4, :9]
        base = v[:, :, 0].min()
        s_ = mode + ": "
        for j, nm in enumerate(names):
            t = (v[:, :, j].reshape(-1) - base)/100.0
            t = t[(t >= 0) & (t < 1e4)]
            s_ += f"{nm} {t.min():.1f}/{np.median(t):.1f}/{t.max():.1f} | "
        print(s_)
```
